```python
import torch

def _softmax(x, axis=-1):
    return torch.softmax(x, dim=axis)
def _gelu(x):
    return torch.nn.functional.gelu(x, approximate="tanh")
def _silu(x):
    return torch.nn.functional.silu(x)
def _sigmoid(x):
    return torch.sigmoid(x)
def _layernorm(x, axis=-1, eps=1e-5):
    m = x.mean(dim=axis, keepdim=True)
    v = x.var(dim=axis, keepdim=True, unbiased=False)
    return (x - m) / torch.sqrt(v + eps)
def _scatter_add(tgt, idx, src, axis=0):
    return tgt.clone().index_add_(axis, idx, src)
def _segment_sum(src, seg, n):
    out = torch.zeros((n,) + src.shape[1:], dtype=src.dtype)
    return out.index_add_(0, seg, src)
def _pad(x, pw):
    flat = tuple(v for pair in reversed(pw) for v in pair)
    return torch.nn.functional.pad(x, flat)

kernel_name = 'standalone__gqa_softmax__near_ridge'

def setup_inputs():

    _w = (lambda a: (lambda t: t.to(torch.bfloat16) if t.is_floating_point() else t)(torch.as_tensor(a)))
    B, Hq, Hkv, Sq, Sk, D = 32, 32, 16, 384, 512, 128
    return {
        "q": _w((lambda *s: torch.randn(*s, dtype=torch.bfloat16) * 0.8)(B, Hq, Sq, D)),
        "k": _w((lambda *s: torch.randn(*s, dtype=torch.bfloat16) * 0.8)(B, Hkv, Sk, D)),
        "v": _w((lambda *s: torch.randn(*s, dtype=torch.bfloat16) * 0.05)(B, Hkv, Sk, D)),
    }

def reference(q, k, v):
    B, Hq, Sq, D = q.shape
    Hkv = k.shape[1]
    rep = Hq // Hkv
    k = (lambda x, n, axis: torch.repeat_interleave(x, n, dim=axis))(k, rep, axis=1)
    v = (lambda x, n, axis: torch.repeat_interleave(x, n, dim=axis))(v, rep, axis=1)
    scale = D ** -0.5
    scores = torch.einsum("bhqd,bhkd->bhqk", q, k) * scale
    p = _softmax(scores, axis=-1)
    return torch.einsum("bhqk,bhkd->bhqd", p, v)
```

```python
import re
def R(kind, lo, n=1):
    return [f'{kind}{lo+i}' for i in range(n)]
def rs(kind, lo, n=1):
    return f'{kind}{lo}' if n == 1 else f'{kind}[{lo}:{lo+n-1}]'

class Op:
    __slots__ = ('text', 'kind', 'wr', 'rd', 'srcc', 'id', 'need', 'states', 'tag')
    def __init__(self, text, kind, wr=(), rd=(), srcc=(), id=None, need=None, states=1, tag=None):
        self.text = text; self.kind = kind; self.wr = list(wr); self.rd = list(rd)
        self.srcc = list(srcc); self.id = id; self.need = need; self.states = states; self.tag = tag

def mfma(d, a, b, c):
    ctext = '0' if c is None else rs(c[0], c[1], 4)
    t = f'v_mfma_f32_16x16x32_bf16 {rs(d[0],d[1],4)}, {rs(a[0],a[1],4)}, {rs(b[0],b[1],4)}, {ctext}'
    cc = [] if c is None else R(c[0], c[1], 4)
    return Op(t, 'mfma', wr=R(d[0], d[1], 4), rd=R(a[0], a[1], 4) + R(b[0], b[1], 4), srcc=cc)
def smfmac(d, a, b, idx):
    t = f'v_smfmac_f32_16x16x64_bf16 {rs("v",d,4)}, {rs("a",a,4)}, {rs("v",b,8)}, v{idx}'
    return Op(t, 'mfma', wr=R('v', d, 4), rd=R('a', a, 4) + R('v', b, 8) + [f'v{idx}'], srcc=R('v', d, 4))
def valu(text, wr, rd, kind='valu'):
    return Op(text, kind, wr=wr, rd=rd)
def salu(text):
    return Op(text, 'salu')
def nop(n):
    return Op(f's_nop {n}', 'salu', states=n + 1)
def label(name):
    return Op(f'{name}:', 'label', states=0)

def check_hazards(stream, cyclic=True, window=14):
    n = len(stream); errs = []
    for i, p in enumerate(stream):
        if p.kind in ('label',): continue
        dist = 0
        j = i
        steps = 0
        while True:
            j += 1; steps += 1
            if j >= n:
                if not cyclic: break
                j -= n
            if steps > 60: break
            c = stream[j]
            if c.kind == 'label': continue
            need = 0
            pw = set(p.wr)
            if p.kind == 'mfma':
                if c.kind == 'mfma':
                    if pw & set(c.rd): need = max(need, 8)
                    if pw & set(c.srcc):
                        if c.srcc != p.wr or (('smfmac' in c.text) != ('smfmac' in p.text) and False): need = max(need, 6)
                    elif pw & set(c.wr): need = max(need, 6)
                elif c.kind in ('valu', 'trans', 'perm', 'ds', 'vmem'):
                    if pw & (set(c.rd) | set(c.wr)): need = max(need, 8)
                    if c.kind in ('valu', 'trans', 'perm') and set(p.srcc) & set(c.wr): need = max(need, 3)
            if p.kind in ('valu', 'trans', 'perm'):
                if c.kind == 'mfma' and pw & (set(c.rd) | set(c.srcc)): need = max(need, 2)
                if c.kind == 'perm' and pw & set(c.rd): need = max(need, 2)
                if p.kind == 'trans' and c.kind in ('valu', 'perm', 'mfma','ds','vmem') and pw & set(c.rd): need = max(need, 1)
                sw = {r for r in pw if r[0] == 's' or r == 'vcc'}
                if sw and c.kind in ('valu', 'trans') and sw & set(c.rd): need = max(need, 2)
                if sw and c.kind == 'vmem' and sw & set(c.rd): need = max(need, 5)
            if p.kind in ('vmem', 'ds') and p.tag == 'store':
                if c.kind in ('valu', 'trans', 'perm', 'mfma', 'ds', 'vmem') and set(p.rd) & set(c.wr): need = max(need, 2)
            if p.kind == 'salu' and 'm0' in p.wr and c.kind == 'vmem' and 'm0' in c.rd: need = max(need, 1)
            if need > dist:
                errs.append(f'hazard need {need} have {dist}: [{i}] {p.text}  ->  [{j}] {c.text}')
            dist += c.states
            if dist >= window: break
    return errs

def resolve_waits(stream, cyclic=True):
    n = len(stream)
    for i, w in enumerate(stream):
        if w.kind != 'wait' or w.need is None: continue
        parts = []
        for cls, kind, name, mx in (('vm', 'vmem', 'vmcnt', 63), ('lgkm', 'ds', 'lgkmcnt', 15)):
            ids = w.need.get(cls)
            if ids is None: continue
            if ids == 'all':
                parts.append(f'{name}(0)'); continue
            ids = set(ids)
            cnt = 0; j = i; found = False
            for _ in range(n):
                j -= 1
                if j < 0:
                    if not cyclic: break
                    j += n
                o = stream[j]
                if o.kind == kind:
                    if o.id in ids:
                        found = True; break
                    cnt += 1
            assert found, (w.need, i)
            parts.append(f'{name}({min(cnt, mx)})')
        w.text = 's_waitcnt ' + ' '.join(parts)
```

```python
import math, struct, sys
from asmlib import *

NAME = 'standalone__gqa_softmax__near_ridge'
def f2u(x): return struct.unpack('<I', struct.pack('<f', x))[0]
CSC = math.log2(math.e) / math.sqrt(128.0)
QBYTES = 32*32*384*128*2
KBYTES = 32*16*512*128*2
QROUND = 256*98304
KROUND = 128*131072

class Cfg:
    stamp = False
    hi = 2.0**40
    st_flags = ''
    q_flags = ''
    kv_flags = ''
cfg = Cfg()

vKrd, vVrd, vQrd, vDmaV, vDmaK, vOst, vIdx = 1, 2, 3, 4, 5, 6, 7
vNeg = 8; vT, vU = 14, 15; vS = 16; vP = 32; vL = 40; vl, vr = 52, 53; vO = 64
aQ = 0; aK = 96; aV = 160; aOne = 224
sQ, sK, sV, sOd = 4, 8, 12, 16
sKV, sQn, sO, sOb, sC, sNC, sHI, sBlk, sFail, sFl, sM0kv, sM0q, sW, sTmp, sKV0, sQ0 = 20, 21, 22, 23, 24, 25, 26, 27, 28, 30, 32, 33, 34, 35, 36, 37
def srd(n): return f's[{n}:{n+3}]'
def srdr(n): return R('s', n, 4)

def S(T, i=0): return vS + 8*(T % 2) + i
def P(T, i=0): return vP + 4*(T % 2) + i
def O(qb, db=0): return vO + 32*qb + 4*db
def Kf(u, idx): return aK + 32*(u % 2) + 4*idx
def Vf(u, db): return aV + 32*(u % 2) + 4*db
def Qf(qb, s): return aQ + 16*qb + 4*s

def kread(u, idx):
    kb, s = idx >> 2, idx & 3
    off = (u % 4)*16384 + kb*8192 + 2048 + s*256
    return Op(f'ds_read_b128 {rs("a",Kf(u,idx),4)}, v{vKrd} offset:{off}', 'ds', wr=R('a', Kf(u, idx), 4), rd=[f'v{vKrd}'], id=('kr', u % 16, idx))
def vread(u, idx):
    db, kb = idx >> 1, idx & 1
    off = (u % 4)*16384 + kb*8192 + 256*(db >> 1) + 8*(db & 1)
    r = Vf(u, db) + 2*kb
    return Op(f'ds_read_b64_tr_b16 {rs("a",r,2)}, v{vVrd} offset:{off}', 'ds', wr=R('a', r, 2), rd=[f'v{vVrd}'], id=('vr', u % 16, idx))
def qread(qb, s):
    off = qb*4096 + s*256
    return Op(f'ds_read_b128 {rs("a",Qf(qb,s),4)}, v{vQrd} offset:{off}', 'ds', wr=R('a', Qf(qb, s), 4), rd=[f'v{vQrd}'], id=('qr', qb, s))
def kvdma(u, i):
    if i < 2:
        t = f'buffer_load_dwordx4 v{vDmaK}, {srd(sK)}, s{sKV} offen offset:{2048+1024*i} lds{cfg.kv_flags}'
        rd = [f'v{vDmaK}'] + srdr(sK)
    else:
        o = f' offset:{1024*(i-2)}' if i > 2 else ''
        t = f'buffer_load_dwordx4 v{vDmaV}, {srd(sV)}, s{sKV} offen{o} lds{cfg.kv_flags}'
        rd = [f'v{vDmaV}'] + srdr(sV)
    return Op(t, 'vmem', rd=rd + ['m0', f's{sKV}'], id=('kv', u % 16, i), tag='dma')
def qdma(n):
    jj = n & 3
    o = f' offset:{1024*jj}' if jj else ''
    t = f'buffer_load_dwordx4 v{vDmaV}, {srd(sQ)}, s{sQn} offen{o} lds{cfg.q_flags}'
    return Op(t, 'vmem', rd=[f'v{vDmaV}', 'm0', f's{sQn}'] + srdr(sQ), id=('qd', n), tag='dma')
def ostore(qb, j):
    r = O(qb, 2*j)
    o = f' offset:{64*j}' if j else ''
    t = f'buffer_store_dwordx4 {rs("v",r,4)}, v{vOst}, {srd(sOd)}, s{sO} offen{o}{cfg.st_flags}'
    return Op(t, 'vmem', rd=R('v', r, 4) + [f'v{vOst}', f's{sO}'] + srdr(sOd), id=('st', qb, j), tag='store')
def setm0(base, add):
    o = salu(f's_add_u32 m0, s{base}, {add}' if add else f's_mov_b32 m0, s{base}')
    o.wr = ['m0']
    return o
def wait(vm=None, lgkm=None):
    need = {}
    if vm is not None: need['vm'] = vm
    if lgkm is not None: need['lgkm'] = lgkm
    return Op('s_waitcnt ?', 'wait', need=need)

class Gap:
    def __init__(self, m):
        self.m = m; self.pre = []; self.sc = []; self.vm = []; self.ds = []; self.va = []; self.post = []
    def ops(self):
        return self.pre + [self.m] + self.sc + self.vm + self.ds + self.va + self.post

def build_body():
    steps = []
    for T in range(96):
        u, qb = divmod(T, 6)
        Tn = (T+1) % 96; un, qn = divmod(Tn, 6)
        Tp = (T-1) % 96; up, qp = divmod(Tp, 6)
        g = []
        for kb in range(2):
            for s in range(4):
                d = ('v', S(T+1, 4*kb))
                g.append(Gap(mfma(d, ('a', Kf(un, kb*4+s)), ('a', Qf(qn, s)), None if s == 0 else d)))
        for db in range(8):
            d = ('v', O(qp, db))
            g.append(Gap(mfma(d, ('a', Vf(up, db)), ('v', P(Tp)), None if up == 0 else d)))
        x = None
        if T % 2 == 0:
            x = Gap(smfmac(vL + 4*(qp >> 1), aOne, vP, vIdx))
        def f(i): return valu(f'v_fma_f32 v{S(T,i)}, v{S(T,i)}, s{sC}, v{vNeg+qb}', [f'v{S(T,i)}'], [f'v{S(T,i)}', f'v{vNeg+qb}', f's{sC}'])
        def e(i): return valu(f'v_exp_f32 v{S(T,i)}, v{S(T,i)}', [f'v{S(T,i)}'], [f'v{S(T,i)}'], 'trans')
        def c(i): return valu(f'v_cvt_pk_bf16_f32 v{P(T,i)}, v{S(T,2*i)}, v{S(T,2*i+1)}', [f'v{P(T,i)}'], [f'v{S(T,2*i)}', f'v{S(T,2*i+1)}'])
        rd = [kread(u+1, qb*4+i) for i in range(4)] if qb < 2 else [vread(u+1, (qb-2)*4+i) for i in range(4)]
        for i in range(4):
            g[2*i].ds.append(rd[i]); g[2*i].va.append(f(i)); g[2*i+1].va.append(e(i))
        g[8].va += [f(4), c(0)]; g[9].va.append(e(4))
        g[10].va += [f(5), c(1)]; g[11].va.append(e(5))
        g[12].va += [f(6), f(7)]; g[13].va.append(e(6)); g[14].va.append(e(7))
        g[15].va += [c(2), c(3)]
        steps.append((g, x))
    G = lambda T, i: steps[T % 96][0][i]
    X = lambda T: steps[T % 96][1]
    for u in range(16):
        T = 6*u
        G(T-1, 15).sc.append(wait(vm=[('kv', (u+1) % 16, i) for i in range(4)], lgkm='all'))
        G(T, 0).sc.append(Op('s_barrier', 'salu'))
        G(T+4, 15).sc.append(wait(lgkm=[('kr', (u+1) % 16, 7)]))
        G(T-1, 13).sc.append(setm0(sM0kv, (u % 4)*16384))
        hasq = 1 <= u <= 12
        tu = u+4
        X(T).vm.append(kvdma(tu, 0))
        G(T, 3).vm.append(kvdma(tu, 1))
        inc = 8192 + ((KROUND - 131072) if u == 11 else 0)
        if hasq:
            G(T, 7).vm.append(kvdma(tu, 2)); G(T, 11).vm.append(kvdma(tu, 3))
            G(T, 13).sc.append(salu(f's_add_u32 s{sKV}, s{sKV}, {inc}'))
            n = 2*(u-1)
            G(T+1, 1).sc.append(setm0(sM0q, (n >> 2)*4096))
            X(T+2).vm.append(qdma(n)); X(T+4).vm.append(qdma(n+1))
            if (n+1) & 3 == 3:
                qinc = 4096 + ((QROUND - 24576) if n+1 == 23 else 0)
                G(T+4, 3).sc.append(salu(f's_add_u32 s{sQn}, s{sQn}, {qinc}'))
        else:
            X(T+2).vm.append(kvdma(tu, 2)); X(T+4).vm.append(kvdma(tu, 3))
            G(T+4, 3).sc.append(salu(f's_add_u32 s{sKV}, s{sKV}, {inc}'))
    for qb in range(6):
        T = 90+qb
        G(T, 1).sc.append(wait(vm=[('qd', 4*qb+3)]))
        for s in range(4): G(T, 3+2*s).ds.append(qread(qb, s))
        G(T+4, 14).sc.append(wait(lgkm=[('qr', qb, 3)]))
        T = 95+qb
        Sn = lambda i: f'v{S(T+1,i)}'
        t, uu = f'v{vT}', f'v{vU}'
        G(T, 11).va += [valu(f'v_max3_f32 {t}, {Sn(0)}, {Sn(1)}, {Sn(2)}', [t], [Sn(0), Sn(1), Sn(2)]),
                        valu(f'v_max3_f32 {t}, {t}, {Sn(3)}, {Sn(4)}', [t], [t, Sn(3), Sn(4)])]
        G(T, 12).va += [valu(f'v_max3_f32 {t}, {t}, {Sn(5)}, {Sn(6)}', [t], [t, Sn(5), Sn(6)]),
                        valu(f'v_max_f32 {t}, {t}, {Sn(7)}', [t], [t, Sn(7)]),
                        valu(f'v_mov_b32 {uu}, {t}', [uu], [t])]
        G(T, 13).va += [valu(f'v_permlane16_swap_b32 {t}, {uu}', [t, uu], [t, uu], 'perm'),
                        valu(f'v_max_f32 {t}, {t}, {uu}', [t], [t, uu]),
                        valu(f'v_mov_b32 {uu}, {t}', [uu], [t])]
        G(T, 14).va += [valu(f'v_permlane32_swap_b32 {t}, {uu}', [t, uu], [t, uu], 'perm'),
                        valu(f'v_max_f32 {t}, {t}, {uu}', [t], [t, uu])]
        G(T, 15).va += [valu(f'v_mul_f32 v{vNeg+qb}, s{sNC}, {t}', [f'v{vNeg+qb}'], [t, f's{sNC}'])]
        T = 92+qb
        la = vL + 4*(qb >> 1) + 2*(qb & 1)
        G(T, 3).va += [valu(f'v_add_f32 v{vl}, v{la}, v{la+1}', [f'v{vl}'], [f'v{la}', f'v{la+1}']),
                       valu(f'v_rcp_f32 v{vr}, v{vl}', [f'v{vr}'], [f'v{vl}'], 'trans'),
                       valu(f'v_cmp_ngt_f32 vcc, s{sHI}, v{vl}', ['vcc'], [f'v{vl}', f's{sHI}'])]
        G(T, 5).sc.append(salu(f's_or_b64 s[{sFl}:{sFl+1}], s[{sFl}:{sFl+1}], vcc'))
        if qb & 1:
            lb = vL + 4*(qb >> 1)
            G(T, 4).va += [valu(f'v_mov_b32 v{lb+i}, 0', [f'v{lb+i}'], []) for i in range(4)]
        for j in range(4):
            b = O(qb, 2*j)
            mul = [valu(f'v_mul_f32 v{b+i}, v{b+i}, v{vr}', [f'v{b+i}'], [f'v{b+i}', f'v{vr}']) for i in range(8)]
            cv = [valu(f'v_cvt_pk_bf16_f32 v{b+i}, v{b+2*i}, v{b+2*i+1}', [f'v{b+i}'], [f'v{b+2*i}', f'v{b+2*i+1}']) for i in range(4)]
            g0 = 4+3*j
            G(T, g0).va += mul[:4]; G(T, g0+1).va += mul[4:]; G(T, g0+2).va += cv
            if j < 3: G(T, g0+3).vm.append(ostore(qb, j))
            else:
                G(T+1, 0).vm.append(ostore(qb, j))
                if qb < 5: G(T+1, 1).sc.append(salu(f's_add_u32 s{sO}, s{sO}, 4096'))
    G(2, 0).post += [salu(f's_cmp_lg_u64 s[{sFl}:{sFl+1}], 0'), salu(f's_cselect_b32 s{sTmp}, 1, 0'),
                     salu(f's_lshl_b32 s{sTmp}, s{sTmp}, s{sBlk}'), salu(f's_or_b32 s{sFail}, s{sFail}, s{sTmp}'),
                     salu(f's_add_u32 s{sBlk}, s{sBlk}, 1'), salu(f's_cmp_eq_u32 s{sBlk}, 5'), salu('s_cbranch_scc1 L_exit')]
    G(2, 1).sc.append(salu(f's_mov_b64 s[{sFl}:{sFl+1}], 0'))
    G(2, 3).sc.append(salu(f's_mov_b32 s{sO}, s{sOb}'))
    G(2, 5).sc.append(salu(f's_add_u32 s{sOb}, s{sOb}, {QROUND}'))
    G(95, 0).pre.append(label('L_entry'))
    stream = []; marks = {}
    for T in range(96):
        g, x = steps[T]
        marks[T] = len(stream)
        for i in range(16):
            stream += g[i].ops()
            if i == 0 and x is not None: stream += x.ops()
    marks[96] = len(stream)
    return stream, marks

def prologue(body, marks):
    L = []
    a = L.append
    a(f's_cmp_ge_u32 s2, 256'); a('s_cbranch_scc1 L_end')
    a('s_load_dwordx4 s[40:43], s[0:1], 0'); a('s_load_dwordx4 s[44:47], s[0:1], 16')
    a('v_lshrrev_b32 v60, 6, v0'); a('v_and_b32 v0, 63, v0')
    a(f'v_readfirstlane_b32 s{sW}, v60')
    a('v_and_b32 v54, 15, v0')
    a('v_lshrrev_b32 v55, 4, v0')
    a('v_and_b32 v56, 3, v0')
    a('v_bfe_u32 v57, v0, 2, 2')
    a(f'v_lshlrev_b32 v{vDmaV}, 8, v57'); a(f'v_lshl_add_u32 v{vDmaV}, v55, 6, v{vDmaV}')
    a(f'v_lshl_add_u32 v{vDmaV}, v56, 4, v{vDmaV}')
    a('v_and_b32 v58, 1, v60'); a('v_lshlrev_b32 v58, 5, v58'); a(f'v_xor_b32 v{vDmaK}, v{vDmaV}, v58')
    a('s_and_b32 s48, s2, 7'); a('s_lshr_b32 s49, s2, 3'); a('s_and_b32 s50, s49, 1'); a('s_lshr_b32 s49, s49, 1')
    a('s_lshl_b32 s49, s49, 3'); a('s_add_u32 s49, s49, s48')
    a(f's_lshl_b32 s{sKV0}, s49, 17')
    a('s_lshl_b32 s49, s49, 1'); a('s_add_u32 s49, s49, s50')
    a(f's_mul_i32 s{sQ0}, s49, 98304')
    a(f's_mul_i32 s51, s{sW}, 24576')
    a(f's_add_u32 s{sQ0}, s{sQ0}, s51')
    a(f's_add_u32 s{sM0q}, s51, 65536')
    a(f's_lshl_b32 s{sM0kv}, s{sW}, 12')
    a(f's_lshl_b32 s52, s{sW}, 11')
    a(f's_add_u32 s{sKV}, s{sKV0}, s52')
    a(f's_mov_b32 s{sQn}, s{sQ0}')
    a(f's_mov_b32 s{sOb}, s{sQ0}')
    a(f's_mov_b32 s{sO}, 0x7000000')
    a('s_waitcnt lgkmcnt(0)')
    a(f's_mov_b32 s{sQ}, s40'); a(f's_mov_b32 s{sQ+1}, s41'); a(f's_mov_b32 s{sQ+2}, {QBYTES}'); a(f's_mov_b32 s{sQ+3}, 0x20000')
    a(f's_sub_u32 s{sK}, s42, 2048'); a(f's_subb_u32 s{sK+1}, s43, 0'); a(f's_mov_b32 s{sK+2}, {KBYTES+2048}'); a(f's_mov_b32 s{sK+3}, 0x20000')
    a(f's_mov_b32 s{sV}, s44'); a(f's_mov_b32 s{sV+1}, s45'); a(f's_mov_b32 s{sV+2}, {KBYTES}'); a(f's_mov_b32 s{sV+3}, 0x20000')
    a(f's_mov_b32 s{sOd}, s46'); a(f's_mov_b32 s{sOd+1}, s47'); a(f's_mov_b32 s{sOd+2}, {QBYTES}'); a(f's_mov_b32 s{sOd+3}, 0x20000')
    a(f'v_lshlrev_b32 v{vOst}, 8, v54'); a(f'v_lshl_add_u32 v{vOst}, v55, 4, v{vOst}')
    seq = []
    seq += [setm0(sM0kv, 0), nop(0)] + [kvdma(0, i) for i in range(4)] + [salu(f's_add_u32 s{sKV}, s{sKV}, 8192')]
    for qb in range(6):
        seq += [setm0(sM0q, qb*4096), nop(0)] + [qdma(4*qb+j) for j in range(4)]
        seq.append(salu(f's_add_u32 s{sQn}, s{sQn}, {4096 + ((QROUND-24576) if qb == 5 else 0)}'))
    for o in body[marks[78]:marks[95]]:
        if o.kind != 'vmem': continue
        if o.id[0] == 'kv':
            if o.id[2] == 0: seq += [setm0(sM0kv, (o.id[1] % 4)*16384), nop(0)]
            seq.append(o)
            if o.id[2] == 3: seq.append(salu(f's_add_u32 s{sKV}, s{sKV}, 8192'))
        else:
            assert o.id[0] == 'st'
            seq.append(o)
    mid = []
    m = mid.append
    m('v_bfe_u32 v58, v0, 3, 1'); m(f'v_lshlrev_b32 v{vKrd}, 12, v58')
    m('v_lshlrev_b32 v58, 1, v58'); m('v_xor_b32 v58, v58, v55'); m(f'v_lshl_add_u32 v{vKrd}, v58, 4, v{vKrd}')
    m('v_bfe_u32 v58, v0, 2, 1'); m(f'v_lshl_add_u32 v{vKrd}, v58, 10, v{vKrd}')
    m(f'v_lshl_add_u32 v{vKrd}, v56, 6, v{vKrd}')
    m('v_lshrrev_b32 v58, 5, v0'); m(f'v_lshlrev_b32 v{vVrd}, 12, v58')
    m('v_bfe_u32 v58, v0, 4, 1'); m(f'v_lshl_add_u32 v{vVrd}, v58, 10, v{vVrd}')
    m(f'v_lshl_add_u32 v{vVrd}, v54, 4, v{vVrd}')
    m(f'v_lshlrev_b32 v{vQrd}, 10, v57'); m(f'v_lshl_add_u32 v{vQrd}, v56, 6, v{vQrd}')
    m(f'v_lshl_add_u32 v{vQrd}, v55, 4, v{vQrd}'); m(f'v_add_u32 v{vQrd}, s{sM0q}, v{vQrd}')
    m('v_bfe_u32 v58, v0, 1, 1'); m('v_lshrrev_b32 v59, 5, v0'); m('v_cmp_eq_u32 vcc, v58, v59')
    m('v_mov_b32 v58, 0x3f803f80'); m('s_nop 1'); m('v_cndmask_b32 v58, 0, v58, vcc')
    for i in range(4): m(f'v_accvgpr_write_b32 a{aOne+i}, v58')
    m('v_and_b32 v58, 1, v0'); m('v_mul_u32_u24 v58, 0xaaaa, v58'); m(f'v_add_u32 v{vIdx}, 0x4444, v58')
    for i in range(12): m(f'v_mov_b32 v{vL+i}, 0')
    m(f's_mov_b32 s{sC}, {f2u(CSC):#x}'); m(f's_mov_b32 s{sNC}, {f2u(-CSC):#x}'); m(f's_mov_b32 s{sHI}, {f2u(cfg.hi):#x}')
    m(f's_mov_b32 s{sBlk}, 0'); m(f's_mov_b32 s{sFail}, 0'); m(f's_mov_b64 s[{sFl}:{sFl+1}], 0')
    seq += [salu(t) for t in mid]
    seq += [wait(vm=[('kv', 0, i) for i in range(4)]), salu('s_barrier')]
    rds = [o for o in body[marks[90]:marks[95]] if o.kind == 'ds']
    seq += [o for o in rds if o.id[0] != 'qr']
    for qb in range(5):
        seq.append(wait(vm=[('qd', 4*qb+3)]))
        seq += [o for o in rds if o.id[0] == 'qr' and o.id[1] == qb]
    seq.append(wait(lgkm='all'))
    resolve_waits(seq, cyclic=False)
    L += [o.text for o in seq]
    a('s_branch L_entry')
    return L

def slowpath():
    L = []; a = L.append
    mf = lambda d, x, y, c: f'v_mfma_f32_16x16x32_bf16 v[{d}:{d+3}], v[{x}:{x+3}], v[{y}:{y+3}], ' + ('0' if c is None else f'v[{c}:{c+3}]')
    a('L_exit:')
    a(f's_lshr_b32 s{sFail}, s{sFail}, 1')
    a(f's_cmp_eq_u32 s{sFail}, 0'); a('s_cbranch_scc1 L_end')
    a('s_waitcnt vmcnt(0) lgkmcnt(0)')
    a('v_lshrrev_b32 v58, 4, v0'); a('v_and_b32 v59, 15, v0')
    a('v_lshlrev_b32 v60, 10, v58'); a('v_lshl_add_u32 v60, v59, 4, v60'); a(f'v_add_u32 v60, s{sM0q}, v60')
    a(f's_mov_b32 s40, s{sQ0}'); a(f's_mov_b32 s41, s{sKV0}')
    a('L_sb:')
    a(f's_and_b32 s42, s{sFail}, 1'); a('s_cmp_eq_u32 s42, 0'); a('s_cbranch_scc1 L_sb_next')
    a('s_mov_b32 s43, s40'); a('s_mov_b32 s44, 6')
    a('L_sq:')
    for s in range(4): a(f'buffer_load_dwordx4 v[{64+4*s}:{67+4*s}], v{vOst}, {srd(sQ)}, s43 offen offset:{64*s}')
    a('v_mov_b32 v14, 0xff800000')
    a('s_mov_b32 s45, s41'); a('s_mov_b32 s46, 32')
    a('L_s1:')
    for s in range(4): a(f'buffer_load_dwordx4 v[{80+4*s}:{83+4*s}], v{vOst}, {srd(sK)}, s45 offen offset:{2048+64*s}')
    a('s_waitcnt vmcnt(0)')
    for s in range(4): a(mf(16, 80+4*s, 64+4*s, None if s == 0 else 16))
    a('s_nop 15')
    a('v_max3_f32 v14, v14, v16, v17'); a('v_max3_f32 v14, v14, v18, v19')
    a('s_add_u32 s45, s45, 4096'); a('s_sub_u32 s46, s46, 1'); a('s_cmp_lg_u32 s46, 0'); a('s_cbranch_scc1 L_s1')
    for sw in ('16', '32'):
        a('v_mov_b32 v15, v14'); a('s_nop 1'); a(f'v_permlane{sw}_swap_b32 v14, v15'); a('s_nop 1'); a('v_max_f32 v14, v14, v15')
    a(f'v_mul_f32 v14, s{sNC}, v14')
    a('v_mov_b32 v52, 0')
    for i in range(32): a(f'v_mov_b32 v{128+i}, 0')
    a('s_mov_b32 s45, s41'); a('s_mov_b32 s46, 16')
    a('L_s2:')
    a('s_add_u32 s47, s45, 4096')
    for kb in range(2):
        for s in range(4): a(f'buffer_load_dwordx4 v[{80+16*kb+4*s}:{83+16*kb+4*s}], v{vOst}, {srd(sK)}, s{45+2*kb} offen offset:{2048+64*s}')
    for h in range(2):
        a(f's_add_u32 m0, s{sM0q}, {4096*h}'); a('s_nop 0')
        for j in range(4): a(f'buffer_load_dwordx4 v{vDmaV}, {srd(sV)}, s{45+2*h} offen offset:{1024*j} lds')
    a('s_waitcnt vmcnt(0)')
    for db in range(8):
        for kb in range(2):
            r = 160+4*db+2*kb
            a(f'ds_read_b64_tr_b16 v[{r}:{r+1}], v60 offset:{kb*4096+256*(db>>1)+8*(db&1)}')
    for kb in range(2):
        for s in range(4): a(mf(16+4*kb, 80+16*kb+4*s, 64+4*s, None if s == 0 else 16+4*kb))
    a('s_nop 15')
    for i in range(8): a(f'v_fma_f32 v{16+i}, v{16+i}, s{sC}, v14')
    for i in range(8): a(f'v_exp_f32 v{16+i}, v{16+i}')
    a('s_nop 0')
    for i in range(8): a(f'v_add_f32 v52, v52, v{16+i}')
    for i in range(4): a(f'v_cvt_pk_bf16_f32 v{32+i}, v{16+2*i}, v{17+2*i}')
    a('s_waitcnt lgkmcnt(0)'); a('s_nop 1')
    for db in range(8): a(mf(128+4*db, 160+4*db, 32, 128+4*db))
    a('s_add_u32 s45, s45, 8192'); a('s_sub_u32 s46, s46, 1'); a('s_cmp_lg_u32 s46, 0'); a('s_cbranch_scc1 L_s2')
    for sw in ('16', '32'):
        a('v_mov_b32 v15, v52'); a('s_nop 1'); a(f'v_permlane{sw}_swap_b32 v52, v15'); a('s_nop 1'); a('v_add_f32 v52, v52, v15')
    a('v_rcp_f32 v53, v52')
    a('s_nop 15')
    for i in range(32): a(f'v_mul_f32 v{128+i}, v{128+i}, v53')
    for j in range(4):
        b = 128+8*j
        for i in range(4): a(f'v_cvt_pk_bf16_f32 v{b+i}, v{b+2*i}, v{b+2*i+1}')
        a(f'buffer_store_dwordx4 v[{b}:{b+3}], v{vOst}, {srd(sOd)}, s43 offen offset:{64*j}')
    a('s_waitcnt vmcnt(0)')
    a('s_add_u32 s43, s43, 4096'); a('s_sub_u32 s44, s44, 1'); a('s_cmp_lg_u32 s44, 0'); a('s_cbranch_scc1 L_sq')
    a('L_sb_next:')
    a(f's_add_u32 s40, s40, {QROUND}'); a(f's_add_u32 s41, s41, {KROUND}')
    a(f's_lshr_b32 s{sFail}, s{sFail}, 1'); a(f's_cmp_lg_u32 s{sFail}, 0'); a('s_cbranch_scc1 L_sb')
    a('L_end:')
    a('s_endpgm')
    return L

def generate(path):
    body, marks = build_body()
    body_l = body + [salu('s_branch L_loop')]
    resolve_waits(body_l)
    errs = check_hazards(body_l)
    for e in errs[:40]: print(e)
    assert not errs, f'{len(errs)} hazards'
    head = open('cdna_kernels/%s.s.ref' % NAME).read().split('\n')
    hdr = [l for l in head if l.startswith(';') and '@launch' not in l]
    out = hdr + ['; @launch grid=(256,1,1) block=(256,1,1) lds=163840',
                 '.amdgcn_target "amdgcn-amd-amdhsa--gfx950"', '.text', f'.globl {NAME}_kernel', '.p2align 8',
                 f'.type {NAME}_kernel,@function', f'{NAME}_kernel:']
    fmt = lambda t: t if t.endswith(':') else '  ' + t
    out += [fmt(t) for t in prologue(body, marks)]
    out += ['.p2align 6', 'L_loop:'] + [fmt(o.text) for o in body_l]
    out += [fmt(t) for t in slowpath()]
    out += ['.section .rodata,"a"', '.p2align 6', f'.amdhsa_kernel {NAME}_kernel',
            '  .amdhsa_next_free_vgpr 512', '  .amdhsa_next_free_sgpr 64', '  .amdhsa_accum_offset 256',
            '  .amdhsa_group_segment_fixed_size 0', '  .amdhsa_kernarg_size 48', '  .amdhsa_user_sgpr_count 2',
            '  .amdhsa_user_sgpr_kernarg_segment_ptr 1', '  .amdhsa_system_sgpr_workgroup_id_x 1', '.end_amdhsa_kernel', '']
    open(path, 'w').write('\n'.join(out))
    print('ops in body', len(body_l))

if __name__ == '__main__':
    generate(sys.argv[1] if len(sys.argv) > 1 else f'cdna_kernels/{NAME}.s')
```

```python
import math, struct, sys
from asmlib import *

NAME = 'standalone__gqa_softmax__near_ridge'
def f2u(x): return struct.unpack('<I', struct.pack('<f', x))[0]
CSC = math.log2(math.e) / math.sqrt(128.0)
QBYTES = 32*32*384*128*2
KBYTES = 32*16*512*128*2
QROUND = 256*98304
KROUND = 128*131072

class Cfg:
    stamp = False
    hi = 2.0**40
    st_flags = ''
    q_flags = ' nt'
    kv_flags = ' nt'
    codepf = True
    rot = 0
    nostore = False
    noq = False
    drop = ''
    qkorder = 'chain'
cfg = Cfg()

vKrd, vVrd, vQrd, vDmaV, vDmaK, vOst, vIdx = 1, 2, 3, 4, 5, 6, 7
vOw, vOr = 62, 63
vNeg = 8; vT, vU = 14, 15; vS = 16; vP = 32; vL = 40; vl, vr = 52, 53; vO = 64
aQ = 0; aK = 96; aV = 160; aOne = 224; aSt = 228
sQ, sK, sV, sOd = 4, 8, 12, 16
sKV, sQn, sO, sOb, sC, sNC, sHI, sBlk, sFail, sFl, sM0kv, sM0q, sW, sTmp, sKV0, sQ0 = 20, 21, 22, 23, 24, 25, 26, 27, 28, 30, 32, 33, 34, 35, 36, 37
def srd(n): return f's[{n}:{n+3}]'
def srdr(n): return R('s', n, 4)

def S(T, i=0): return vS + 8*(T % 2) + i
def P(T, i=0): return vP + 4*(T % 2) + i
def O(qb, db=0): return vO + 32*qb + 4*db
def Kf(u, idx): return aK + 32*(u % 2) + 4*idx
def Vf(u, db): return aV + 32*(u % 2) + 4*db
def Qf(qb, s): return aQ + 16*qb + 4*s

def kread(u, idx):
    kb, s = idx >> 2, idx & 3
    off = (u % 4)*16384 + kb*8192 + 2048 + s*256
    return Op(f'ds_read_b128 {rs("a",Kf(u,idx),4)}, v{vKrd} offset:{off}', 'ds', wr=R('a', Kf(u, idx), 4), rd=[f'v{vKrd}'], id=('kr', u % 16, idx))
def vread(u, idx):
    db, kb = idx >> 1, idx & 1
    off = (u % 4)*16384 + kb*8192 + 256*(db >> 1) + 8*(db & 1)
    r = Vf(u, db) + 2*kb
    return Op(f'ds_read_b64_tr_b16 {rs("a",r,2)}, v{vVrd} offset:{off}', 'ds', wr=R('a', r, 2), rd=[f'v{vVrd}'], id=('vr', u % 16, idx))
def qread(qb, s):
    off = qb*4096 + s*256
    return Op(f'ds_read_b128 {rs("a",Qf(qb,s),4)}, v{vQrd} offset:{off}', 'ds', wr=R('a', Qf(qb, s), 4), rd=[f'v{vQrd}'], id=('qr', qb, s))
def kvdma(u, i):
    if i < 2:
        t = f'buffer_load_dwordx4 v{vDmaK}, {srd(sK)}, s{sKV} offen offset:{2048+1024*i}{cfg.kv_flags} lds'
        rd = [f'v{vDmaK}'] + srdr(sK)
    else:
        o = f' offset:{1024*(i-2)}' if i > 2 else ''
        t = f'buffer_load_dwordx4 v{vDmaV}, {srd(sV)}, s{sKV} offen{o}{cfg.kv_flags} lds'
        rd = [f'v{vDmaV}'] + srdr(sV)
    return Op(t, 'vmem', rd=rd + ['m0', f's{sKV}'], id=('kv', u % 16, i), tag='dma')
def qdma(n):
    jj = n & 3
    o = f' offset:{1024*jj}' if jj else ''
    t = f'buffer_load_dwordx4 v{vDmaV}, {srd(sQ)}, s{sQn} offen{o}{cfg.q_flags} lds'
    return Op(t, 'vmem', rd=[f'v{vDmaV}', 'm0', f's{sQn}'] + srdr(sQ), id=('qd', n), tag='dma')
def owrite(qb, j):
    r = O(qb, 2*j)
    return Op(f'ds_write_b128 v{vOw}, {rs("v",r,4)} offset:{qb*4096+j*1024}', 'ds', rd=R('v', r, 4) + [f'v{vOw}'], id=('ow', qb, j), tag='store')
def oread(n, slot=None):
    qb, h, qh = n >> 2, (n >> 1) & 1, n & 1
    r = aSt + 4*((n & 1) if slot is None else slot)
    return Op(f'ds_read_b128 {rs("a",r,4)}, v{vOr} offset:{qb*4096+h*2048+qh*512}', 'ds', wr=R('a', r, 4), rd=[f'v{vOr}'], id=('or', n))
def ostore(n, slot=None):
    h, qh = (n >> 1) & 1, n & 1
    r = aSt + 4*((n & 1) if slot is None else slot)
    off = qh*2048 + h*128
    o = f' offset:{off}' if off else ''
    t = f'buffer_store_dwordx4 {rs("a",r,4)}, v{vOst}, {srd(sOd)}, s{sO} offen{o}{cfg.st_flags}'
    return Op(t, 'vmem', rd=R('a', r, 4) + [f'v{vOst}', f's{sO}'] + srdr(sOd), id=('st', n), tag='store')
def setm0(base, add):
    o = salu(f's_add_u32 m0, s{base}, {add}' if add else f's_mov_b32 m0, s{base}')
    o.wr = ['m0']
    return o
def wait(vm=None, lgkm=None):
    need = {}
    if vm is not None: need['vm'] = vm
    if lgkm is not None: need['lgkm'] = lgkm
    return Op('s_waitcnt ?', 'wait', need=need)

class Gap:
    def __init__(self, m):
        self.m = m; self.pre = []; self.sc = []; self.vm = []; self.ds = []; self.va = []; self.post = []
    def ops(self):
        return self.pre + [self.m] + self.sc + self.vm + self.ds + self.va + self.post

def build_body():
    steps = []
    for T in range(96):
        u, qb = divmod(T, 6)
        Tn = (T+1) % 96; un, qn = divmod(Tn, 6)
        Tp = (T-1) % 96; up, qp = divmod(Tp, 6)
        g = []
        order = [(kb, s) for kb in range(2) for s in range(4)]
        if cfg.qkorder == 'pair': order = [(kb, s) for s in range(4) for kb in range(2)]
        if cfg.qkorder == 'snake': order = [(0,0),(1,0),(1,1),(0,1),(0,2),(1,2),(1,3),(0,3)]
        for kb, s in order:
            d = ('v', S(T+1, 4*kb))
            g.append(Gap(mfma(d, ('a', Kf(un, kb*4+s)), ('a', Qf(qn, s)), None if s == 0 else d)))
        for db in range(8):
            d = ('v', O(qp, db))
            g.append(Gap(mfma(d, ('a', Vf(up, db)), ('v', P(Tp)), None if up == 0 else d)))
        x = None
        if T % 2 == 0:
            x = Gap(smfmac(vL + 4*(qp >> 1), aOne, vP, vIdx))
        def f(i): return valu(f'v_fma_f32 v{S(T,i)}, v{S(T,i)}, s{sC}, v{vNeg+qb}', [f'v{S(T,i)}'], [f'v{S(T,i)}', f'v{vNeg+qb}', f's{sC}'])
        def e(i): return valu(f'v_exp_f32 v{S(T,i)}, v{S(T,i)}', [f'v{S(T,i)}'], [f'v{S(T,i)}'], 'trans')
        def c(i): return valu(f'v_cvt_pk_bf16_f32 v{P(T,i)}, v{S(T,2*i)}, v{S(T,2*i+1)}', [f'v{P(T,i)}'], [f'v{S(T,2*i)}', f'v{S(T,2*i+1)}'])
        rd = [kread(u+1, qb*4+i) for i in range(4)] if qb < 2 else [vread(u+1, (qb-2)*4+i) for i in range(4)]
        for i in range(4):
            g[2*i].ds.append(rd[i]); g[2*i].va.append(f(i)); g[2*i+1].va.append(e(i))
        g[8].va += [f(4), c(0)]; g[9].va.append(e(4))
        g[10].va += [f(5), c(1)]; g[11].va.append(e(5))
        g[12].va += [f(6), f(7)]; g[13].va.append(e(6)); g[14].va.append(e(7))
        g[15].va += [c(2), c(3)]
        steps.append((g, x))
    G = lambda T, i: steps[T % 96][0][i]
    X = lambda T: steps[T % 96][1]
    for u in range(16):
        T = 6*u
        G(T-1, 15).sc.append(wait(vm=[('kv', (u+1) % 16, i) for i in range(4)], lgkm='all'))
        G(T, 0).sc.append(Op('s_barrier', 'salu'))
        if cfg.stamp:
            G(T, 0).post += [salu(f'v_writelane_b32 v54, s60, {(u-1)%16}'), salu(f'v_writelane_b32 v55, s62, {(u-1)%16}'),
                             salu('s_memtime s[60:61]'), salu('s_memrealtime s[62:63]')]
            if u == 1: G(T, 0).pre += [salu(f'v_mov_b32 v{61-i}, v{59-i}') for i in range(6)]
        G(T+4, 15).sc.append(wait(lgkm=[('kr', (u+1) % 16, 7)]))
        G(T-1, 13).sc.append(setm0(sM0kv, (u % 4)*16384))
        hasq = 1 <= u <= 12
        tu = u+4
        X(T).vm.append(kvdma(tu, 0))
        G(T, 3).vm.append(kvdma(tu, 1))
        G(T+5, 1).sc.append(salu('s_add_u32 s39, s39, 8192'))
        G(T+5, 3).sc.append(salu('s_and_b32 s39, s39, 0x1ffff'))
        if u == 11: G(T+5, 5).sc.append(salu(f's_add_u32 s38, s38, {KROUND}'))
        G(T+5, 7).sc.append(salu(f's_add_u32 s{sKV}, s38, s39'))
        if hasq:
            G(T, 7).vm.append(kvdma(tu, 2)); G(T, 11).vm.append(kvdma(tu, 3))
            n = 2*(u-1)
            G(T+1, 1).sc.append(setm0(sM0q, (n >> 2)*4096))
            X(T+2).vm.append(qdma(n)); X(T+4).vm.append(qdma(n+1))
            if (n+1) & 3 == 3:
                qinc = 4096 + ((QROUND - 24576) if n+1 == 23 else 0)
                G(T+4, 3).sc.append(salu(f's_add_u32 s{sQn}, s{sQn}, {qinc}'))
        else:
            X(T+2).vm.append(kvdma(tu, 2)); X(T+4).vm.append(kvdma(tu, 3))
    for qb in range(6):
        T = 90+qb
        G(T, 1).sc.append(wait(vm=[('qd', 4*qb+3)]))
        for s in range(4): G(T, 3+2*s).ds.append(qread(qb, s))
        G(T+4, 14).sc.append(wait(lgkm=[('qr', qb, 3)]))
        T = 95+qb
        Sn = lambda i: f'v{S(T+1,i)}'
        t, uu = f'v{vT}', f'v{vU}'
        G(T, 11).va += [valu(f'v_max3_f32 {t}, {Sn(0)}, {Sn(1)}, {Sn(2)}', [t], [Sn(0), Sn(1), Sn(2)]),
                        valu(f'v_max3_f32 {t}, {t}, {Sn(3)}, {Sn(4)}', [t], [t, Sn(3), Sn(4)])]
        G(T, 12).va += [valu(f'v_max3_f32 {t}, {t}, {Sn(5)}, {Sn(6)}', [t], [t, Sn(5), Sn(6)]),
                        valu(f'v_max_f32 {t}, {t}, {Sn(7)}', [t], [t, Sn(7)]),
                        valu(f'v_mov_b32 {uu}, {t}', [uu], [t])]
        G(T, 13).va += [valu(f'v_permlane16_swap_b32 {t}, {uu}', [t, uu], [t, uu], 'perm'),
                        valu(f'v_max_f32 {t}, {t}, {uu}', [t], [t, uu]),
                        valu(f'v_mov_b32 {uu}, {t}', [uu], [t])]
        G(T, 14).va += [valu(f'v_permlane32_swap_b32 {t}, {uu}', [t, uu], [t, uu], 'perm'),
                        valu(f'v_max_f32 {t}, {t}, {uu}', [t], [t, uu])]
        G(T, 15).va += [valu(f'v_mul_f32 v{vNeg+qb}, s{sNC}, {t}', [f'v{vNeg+qb}'], [t, f's{sNC}'])]
        T = 92+qb
        la = vL + 4*(qb >> 1) + 2*(qb & 1)
        G(T, 3).va += [valu(f'v_add_f32 v{vl}, v{la}, v{la+1}', [f'v{vl}'], [f'v{la}', f'v{la+1}']),
                       valu(f'v_rcp_f32 v{vr}, v{vl}', [f'v{vr}'], [f'v{vl}'], 'trans'),
                       valu(f'v_cmp_ngt_f32 vcc, s{sHI}, v{vl}', ['vcc'], [f'v{vl}', f's{sHI}'])]
        G(T, 5).sc.append(salu(f's_or_b64 s[{sFl}:{sFl+1}], s[{sFl}:{sFl+1}], vcc'))
        if qb & 1:
            lb = vL + 4*(qb >> 1)
            G(T, 4).va += [valu(f'v_mov_b32 v{lb+i}, 0', [f'v{lb+i}'], []) for i in range(4)]
        for j in range(4):
            b = O(qb, 2*j)
            mul = [valu(f'v_mul_f32 v{b+i}, v{b+i}, v{vr}', [f'v{b+i}'], [f'v{b+i}', f'v{vr}']) for i in range(8)]
            cv = [valu(f'v_cvt_pk_bf16_f32 v{b+i}, v{b+2*i}, v{b+2*i+1}', [f'v{b+i}'], [f'v{b+2*i}', f'v{b+2*i+1}']) for i in range(4)]
            g0 = 4+3*j
            G(T, g0).va += mul[:4]; G(T, g0+1).va += mul[4:]; G(T, g0+2).va += cv
            if j < 3: G(T, g0+3).ds.append(owrite(qb, j))
            else: G(T+1, 0).ds.append(owrite(qb, j))
    for u in range(12):
        T = 6*u
        for k in range(2):
            n = 2*u+k
            G(T+2+2*k, 8).ds.append(oread(n))
            G(T+3+2*k, 8).sc.append(wait(lgkm=[('or', n)]))
            G(T+3+2*k, 9).vm.append(ostore(n))
        if u & 1: G(T+5, 11).sc.append(salu(f's_add_u32 s{sO}, s{sO}, 4096'))
    G(2, 0).post += [salu(f's_cmp_lg_u64 s[{sFl}:{sFl+1}], 0'), salu(f's_cselect_b32 s{sTmp}, 1, 0'),
                     salu(f's_lshl_b32 s{sTmp}, s{sTmp}, s{sBlk}'), salu(f's_or_b32 s{sFail}, s{sFail}, s{sTmp}'),
                     salu(f's_add_u32 s{sBlk}, s{sBlk}, 1'), salu(f's_cmp_eq_u32 s{sBlk}, 5'), salu('s_cbranch_scc1 L_exit')]
    G(2, 1).sc.append(salu(f's_mov_b64 s[{sFl}:{sFl+1}], 0'))
    G(80, 3).sc.append(salu(f's_mov_b32 s{sO}, s{sOb}' if not cfg.nostore else f's_mov_b32 s{sO}, 0x7000000'))
    if cfg.noq: G(2, 7).sc.append(salu(f's_mov_b32 s{sQ+2}, 0'))
    G(80, 5).sc.append(salu(f's_add_u32 s{sOb}, s{sOb}, {QROUND}'))
    G(95, 0).pre.append(label('L_entry'))
    stream = []; marks = {}
    for T in range(96):
        g, x = steps[T]
        marks[T] = len(stream)
        for i in range(16):
            stream += g[i].ops()
            if i == 0 and x is not None: stream += x.ops()
    marks[96] = len(stream)
    for o in stream:
        t = o.text
        if ('f' in cfg.drop and t.startswith('v_fma')) or ('e' in cfg.drop and t.startswith('v_exp')) or \
           ('c' in cfg.drop and t.startswith('v_cvt') and o.wr[0] in R('v', vP, 8)) or ('s' in cfg.drop and 'smfmac' in t) or \
           ('r' in cfg.drop and o.kind == 'ds' and o.id[0] in ('kr', 'vr') and 2 <= o.id[1]) or \
           ('d' in cfg.drop and o.kind == 'vmem' and o.id[0] == 'kv' and o.id[1] >= 4) or \
           ('q' in cfg.drop and o.kind == 'mfma' and o.wr[0] in R('v', vS, 16)) or \
           ('p' in cfg.drop and o.kind == 'mfma' and 'smfmac' not in t and o.wr[0] not in R('v', vS, 16)):
            o.text = 's_nop 0'
    return stream, marks

def prologue(body, marks):
    L = []
    a = L.append
    a(f's_cmp_ge_u32 s2, 256'); a('s_cbranch_scc1 L_end')
    a('s_load_dwordx4 s[40:43], s[0:1], 0'); a('s_load_dwordx4 s[44:47], s[0:1], 16')
    if cfg.stamp:
        a('s_memtime s[66:67]'); a('s_memrealtime s[68:69]'); a('s_load_dwordx2 s[72:73], s[0:1], 40'); a('s_mov_b32 s64, 63')
    a('v_lshrrev_b32 v60, 6, v0'); a('v_and_b32 v0, 63, v0')
    a(f'v_readfirstlane_b32 s{sW}, v60')
    a('v_and_b32 v54, 15, v0')
    a('v_lshrrev_b32 v55, 4, v0')
    a('v_and_b32 v56, 3, v0')
    a('v_bfe_u32 v57, v0, 2, 2')
    a(f'v_lshlrev_b32 v{vDmaV}, 8, v57'); a(f'v_lshl_add_u32 v{vDmaV}, v55, 6, v{vDmaV}')
    a(f'v_lshl_add_u32 v{vDmaV}, v56, 4, v{vDmaV}')
    a('v_and_b32 v58, 1, v60'); a('v_lshlrev_b32 v58, 5, v58'); a(f'v_xor_b32 v{vDmaK}, v{vDmaV}, v58')
    a('s_and_b32 s48, s2, 7'); a('s_lshr_b32 s49, s2, 3'); a('s_and_b32 s50, s49, 1'); a('s_lshr_b32 s49, s49, 1')
    a('s_lshl_b32 s49, s49, 3'); a('s_add_u32 s49, s49, s48')
    a(f's_lshl_b32 s{sKV0}, s49, 17')
    a('s_lshl_b32 s49, s49, 1'); a('s_add_u32 s49, s49, s50')
    a(f's_mul_i32 s{sQ0}, s49, 98304')
    a(f's_mul_i32 s51, s{sW}, 24576')
    a(f's_add_u32 s{sQ0}, s{sQ0}, s51')
    a(f's_add_u32 s{sM0q}, s51, 65536')
    a(f's_lshl_b32 s{sM0kv}, s{sW}, 12')
    a(f's_lshl_b32 s52, s{sW}, 11')
    a(f's_add_u32 s38, s{sKV0}, s52')
    if cfg.rot == 1:
        a(f's_lshr_b32 s39, s{sKV0}, 4'); a('s_and_b32 s39, s39, 0x1e000')
    elif cfg.rot == 2:
        a(f's_lshr_b32 s39, s{sKV0}, 7'); a('s_and_b32 s39, s39, 0x1e000')
    else: a('s_mov_b32 s39, 0')
    a(f's_add_u32 s{sKV}, s38, s39')
    a(f's_mov_b32 s{sQn}, s{sQ0}')
    a(f's_mov_b32 s{sOb}, s{sQ0}')
    a(f's_mov_b32 s{sO}, 0x7000000')
    a('s_waitcnt lgkmcnt(0)')
    a(f's_mov_b32 s{sQ}, s40'); a(f's_mov_b32 s{sQ+1}, s41'); a(f's_mov_b32 s{sQ+2}, {QBYTES}'); a(f's_mov_b32 s{sQ+3}, 0x20000')
    a(f's_sub_u32 s{sK}, s42, 2048'); a(f's_subb_u32 s{sK+1}, s43, 0'); a(f's_mov_b32 s{sK+2}, {KBYTES+2048}'); a(f's_mov_b32 s{sK+3}, 0x20000')
    a(f's_mov_b32 s{sV}, s44'); a(f's_mov_b32 s{sV+1}, s45'); a(f's_mov_b32 s{sV+2}, {KBYTES}'); a(f's_mov_b32 s{sV+3}, 0x20000')
    a(f's_mov_b32 s{sOd}, s46'); a(f's_mov_b32 s{sOd+1}, s47'); a(f's_mov_b32 s{sOd+2}, {QBYTES}'); a(f's_mov_b32 s{sOd+3}, 0x20000')
    seq = []
    adv = lambda: [salu('s_add_u32 s39, s39, 8192'), salu('s_and_b32 s39, s39, 0x1ffff'), salu(f's_add_u32 s{sKV}, s38, s39')]
    seq += [setm0(sM0kv, 0), nop(0)] + [kvdma(0, i) for i in range(4)] + adv()
    for qb in range(6):
        seq += [setm0(sM0q, qb*4096), nop(0)] + [qdma(4*qb+j) for j in range(4)]
        seq.append(salu(f's_add_u32 s{sQn}, s{sQn}, {4096 + ((QROUND-24576) if qb == 5 else 0)}'))
    for o in body[marks[78]:marks[95]]:
        if o.kind != 'vmem': continue
        if o.id[0] == 'kv':
            if o.id[2] == 0: seq += [setm0(sM0kv, (o.id[1] % 4)*16384), nop(0)]
            seq.append(o)
            if o.id[2] == 3 and o.id[1] < 3: seq += adv()
        else: assert False
    if cfg.codepf:
        seq += [salu(t) for t in ['s_getpc_b64 s[54:55]', 'L_pc:', 's_add_u32 s54, s54, L_loop-L_pc', 's_addc_u32 s55, s55, 0',
                                  's_lshr_b32 s53, s2, 3', f's_lshl_b32 s53, s53, 2', f's_add_u32 s53, s53, s{sW}', 's_mul_i32 s53, s53, 384',
                                  'v_lshl_add_u32 v58, v0, 7, s53', 'v_min_u32 v58, L_end-L_loop, v58', 'v_cmp_gt_u32 vcc, 3, v0', 's_and_saveexec_b64 s[56:57], vcc']]
        seq.append(Op('global_load_dword v59, v58, s[54:55]', 'vmem', id=('pf',)))
        seq.append(salu('s_mov_b64 exec, s[56:57]'))
    mid = []
    m = mid.append
    m('v_bfe_u32 v58, v0, 3, 1'); m(f'v_lshlrev_b32 v{vKrd}, 12, v58')
    m('v_lshlrev_b32 v58, 1, v58'); m('v_xor_b32 v58, v58, v55'); m(f'v_lshl_add_u32 v{vKrd}, v58, 4, v{vKrd}')
    m('v_bfe_u32 v58, v0, 2, 1'); m(f'v_lshl_add_u32 v{vKrd}, v58, 10, v{vKrd}')
    m(f'v_lshl_add_u32 v{vKrd}, v56, 6, v{vKrd}')
    m('v_lshrrev_b32 v58, 5, v0'); m(f'v_lshlrev_b32 v{vVrd}, 12, v58')
    m('v_bfe_u32 v58, v0, 4, 1'); m(f'v_lshl_add_u32 v{vVrd}, v58, 10, v{vVrd}')
    m(f'v_lshl_add_u32 v{vVrd}, v54, 4, v{vVrd}')
    m(f'v_lshlrev_b32 v{vQrd}, 10, v57'); m(f'v_lshl_add_u32 v{vQrd}, v56, 6, v{vQrd}')
    m(f'v_lshl_add_u32 v{vQrd}, v55, 4, v{vQrd}'); m(f'v_add_u32 v{vQrd}, s{sM0q}, v{vQrd}')
    m('v_bfe_u32 v58, v0, 1, 2'); m('v_xor_b32 v58, v58, v55'); m(f'v_lshlrev_b32 v{vOw}, 4, v58')
    m(f'v_lshl_add_u32 v{vOw}, v54, 6, v{vOw}'); m(f'v_add_u32 v{vOw}, s{sM0q}, v{vOw}')
    m('v_xor_b32 v58, v56, v55'); m(f'v_lshlrev_b32 v{vOr}, 4, v58')
    m('v_bfe_u32 v58, v0, 2, 1'); m(f'v_lshl_add_u32 v{vOr}, v58, 10, v{vOr}')
    m('v_lshrrev_b32 v58, 3, v0'); m(f'v_lshl_add_u32 v{vOr}, v58, 6, v{vOr}'); m(f'v_add_u32 v{vOr}, s{sM0q}, v{vOr}')
    m(f'v_lshlrev_b32 v{vOst}, 8, v58'); m('v_and_b32 v58, 7, v0'); m(f'v_lshl_add_u32 v{vOst}, v58, 4, v{vOst}')
    m('v_bfe_u32 v58, v0, 1, 1'); m('v_lshrrev_b32 v61, 5, v0'); m('v_cmp_eq_u32 vcc, v58, v61')
    m('v_mov_b32 v58, 0x3f803f80'); m('s_nop 1'); m('v_cndmask_b32 v58, 0, v58, vcc')
    for i in range(4): m(f'v_accvgpr_write_b32 a{aOne+i}, v58')
    m('v_and_b32 v58, 1, v0'); m('v_mul_u32_u24 v58, 0xaaaa, v58'); m(f'v_add_u32 v{vIdx}, 0x4444, v58')
    for i in range(12): m(f'v_mov_b32 v{vL+i}, 0')
    m(f's_mov_b32 s{sC}, {f2u(CSC):#x}'); m(f's_mov_b32 s{sNC}, {f2u(-CSC):#x}'); m(f's_mov_b32 s{sHI}, {f2u(cfg.hi):#x}')
    m(f's_mov_b32 s{sBlk}, 0'); m(f's_mov_b32 s{sFail}, 0'); m(f's_mov_b64 s[{sFl}:{sFl+1}], 0')
    seq += [salu(t) for t in mid]
    seq += [wait(vm=[('kv', 0, i) for i in range(4)]), salu('s_barrier')]
    rds = [o for o in body[marks[90]:marks[95]] if o.kind == 'ds' and o.id[0] != 'ow']
    seq += [o for o in rds if o.id[0] != 'qr']
    for qb in range(5):
        seq.append(wait(vm=[('qd', 4*qb+3)]))
        seq += [o for o in rds if o.id[0] == 'qr' and o.id[1] == qb]
    seq.append(wait(lgkm='all'))
    resolve_waits(seq, cyclic=False)
    L += [o.text for o in seq]
    if cfg.stamp:
        a('s_memtime s[76:77]'); a('s_memrealtime s[78:79]'); a('s_waitcnt lgkmcnt(0)')
    a('s_branch L_entry')
    return L

def slowpath():
    L = []; a = L.append
    mf = lambda d, x, y, c: f'v_mfma_f32_16x16x32_bf16 v[{d}:{d+3}], v[{x}:{x+3}], v[{y}:{y+3}], ' + ('0' if c is None else f'v[{c}:{c+3}]')
    a('L_exit:')
    tail = [oread(n, n % 6) for n in range(6)]
    for n in range(24):
        tail += [wait(lgkm=[('or', n)]), ostore(n, n % 6)]
        if n & 3 == 3: tail.append(salu(f's_add_u32 s{sO}, s{sO}, 4096'))
        if n >= 1 and n+5 < 24: tail.append(oread(n+5, (n+5) % 6))
    resolve_waits(tail, cyclic=False)
    L += [o.text for o in tail]
    if cfg.stamp:
        a('s_memtime s[80:81]'); a('s_memrealtime s[82:83]'); a('s_waitcnt vmcnt(0) lgkmcnt(0)')
        a('s_memtime s[84:85]'); a('s_memrealtime s[86:87]'); a('s_waitcnt lgkmcnt(0)')
        a('s_mov_b32 s74, 0x1000000'); a('s_mov_b32 s75, 0x20000')
        a('v_mov_b32 v14, 0')
        for i, r in enumerate([66, 68, 76, 78, 60, 62, 80, 82, 84, 86]): a(f'v_writelane_b32 v14, s{r}, {i}')
        a('s_getreg_b32 s70, hwreg(HW_REG_XCC_ID)'); a('v_writelane_b32 v14, s70, 10')
        a('s_getreg_b32 s70, hwreg(HW_REG_HW_ID)'); a('v_writelane_b32 v14, s70, 11')
        a(f's_lshl_b32 s70, s2, 2'); a(f's_add_u32 s70, s70, s{sW}'); a('s_lshl_b32 s70, s70, 10')
        a('v_lshlrev_b32 v15, 2, v0')
        a('s_mov_b64 exec, 0xffff')
        for b in range(4):
            a(f'buffer_store_dword v{60-2*b}, v15, s[72:75], s70 offen offset:{64*b}')
            a(f'buffer_store_dword v{61-2*b}, v15, s[72:75], s70 offen offset:{256+64*b}')
        a('buffer_store_dword v14, v15, s[72:75], s70 offen offset:512')
        a('s_mov_b64 exec, -1')
    a(f's_lshr_b32 s{sFail}, s{sFail}, 1')
    a(f's_cmp_eq_u32 s{sFail}, 0'); a('s_cbranch_scc1 L_end')
    a('s_waitcnt vmcnt(0) lgkmcnt(0)')
    a('v_lshrrev_b32 v58, 4, v0'); a('v_and_b32 v59, 15, v0')
    a(f'v_lshlrev_b32 v{vOst}, 8, v59'); a(f'v_lshl_add_u32 v{vOst}, v58, 4, v{vOst}')
    a('v_lshlrev_b32 v60, 10, v58'); a('v_lshl_add_u32 v60, v59, 4, v60'); a(f'v_add_u32 v60, s{sM0q}, v60')
    a(f's_mov_b32 s40, s{sQ0}'); a(f's_mov_b32 s41, s{sKV0}')
    a('L_sb:')
    a(f's_and_b32 s42, s{sFail}, 1'); a('s_cmp_eq_u32 s42, 0'); a('s_cbranch_scc1 L_sb_next')
    a('s_mov_b32 s43, s40'); a('s_mov_b32 s44, 6')
    a('L_sq:')
    for s in range(4): a(f'buffer_load_dwordx4 v[{64+4*s}:{67+4*s}], v{vOst}, {srd(sQ)}, s43 offen offset:{64*s}')
    a('v_mov_b32 v14, 0xff800000')
    a('s_mov_b32 s45, s41'); a('s_mov_b32 s46, 32')
    a('L_s1:')
    for s in range(4): a(f'buffer_load_dwordx4 v[{80+4*s}:{83+4*s}], v{vOst}, {srd(sK)}, s45 offen offset:{2048+64*s}')
    a('s_waitcnt vmcnt(0)')
    for s in range(4): a(mf(16, 80+4*s, 64+4*s, None if s == 0 else 16))
    a('s_nop 15')
    a('v_max3_f32 v14, v14, v16, v17'); a('v_max3_f32 v14, v14, v18, v19')
    a('s_add_u32 s45, s45, 4096'); a('s_sub_u32 s46, s46, 1'); a('s_cmp_lg_u32 s46, 0'); a('s_cbranch_scc1 L_s1')
    for sw in ('16', '32'):
        a('v_mov_b32 v15, v14'); a('s_nop 1'); a(f'v_permlane{sw}_swap_b32 v14, v15'); a('s_nop 1'); a('v_max_f32 v14, v14, v15')
    a(f'v_mul_f32 v14, s{sNC}, v14')
    a('v_mov_b32 v52, 0')
    for i in range(32): a(f'v_mov_b32 v{128+i}, 0')
    a('s_mov_b32 s45, s41'); a('s_mov_b32 s46, 16')
    a('L_s2:')
    a('s_add_u32 s47, s45, 4096')
    for kb in range(2):
        for s in range(4): a(f'buffer_load_dwordx4 v[{80+16*kb+4*s}:{83+16*kb+4*s}], v{vOst}, {srd(sK)}, s{45+2*kb} offen offset:{2048+64*s}')
    for h in range(2):
        a(f's_add_u32 m0, s{sM0q}, {4096*h}'); a('s_nop 0')
        for j in range(4): a(f'buffer_load_dwordx4 v{vDmaV}, {srd(sV)}, s{45+2*h} offen offset:{1024*j} lds')
    a('s_waitcnt vmcnt(0)')
    for db in range(8):
        for kb in range(2):
            r = 160+4*db+2*kb
            a(f'ds_read_b64_tr_b16 v[{r}:{r+1}], v60 offset:{kb*4096+256*(db>>1)+8*(db&1)}')
    for kb in range(2):
        for s in range(4): a(mf(16+4*kb, 80+16*kb+4*s, 64+4*s, None if s == 0 else 16+4*kb))
    a('s_nop 15')
    for i in range(8): a(f'v_fma_f32 v{16+i}, v{16+i}, s{sC}, v14')
    for i in range(8): a(f'v_exp_f32 v{16+i}, v{16+i}')
    a('s_nop 0')
    for i in range(8): a(f'v_add_f32 v52, v52, v{16+i}')
    for i in range(4): a(f'v_cvt_pk_bf16_f32 v{32+i}, v{16+2*i}, v{17+2*i}')
    a('s_waitcnt lgkmcnt(0)'); a('s_nop 1')
    for db in range(8): a(mf(128+4*db, 160+4*db, 32, 128+4*db))
    a('s_add_u32 s45, s45, 8192'); a('s_sub_u32 s46, s46, 1'); a('s_cmp_lg_u32 s46, 0'); a('s_cbranch_scc1 L_s2')
    for sw in ('16', '32'):
        a('v_mov_b32 v15, v52'); a('s_nop 1'); a(f'v_permlane{sw}_swap_b32 v52, v15'); a('s_nop 1'); a('v_add_f32 v52, v52, v15')
    a('v_rcp_f32 v53, v52')
    a('s_nop 15')
    for i in range(32): a(f'v_mul_f32 v{128+i}, v{128+i}, v53')
    for j in range(4):
        b = 128+8*j
        for i in range(4): a(f'v_cvt_pk_bf16_f32 v{b+i}, v{b+2*i}, v{b+2*i+1}')
        a(f'buffer_store_dwordx4 v[{b}:{b+3}], v{vOst}, {srd(sOd)}, s43 offen offset:{64*j}')
    a('s_waitcnt vmcnt(0)')
    a('s_add_u32 s43, s43, 4096'); a('s_sub_u32 s44, s44, 1'); a('s_cmp_lg_u32 s44, 0'); a('s_cbranch_scc1 L_sq')
    a('L_sb_next:')
    a(f's_add_u32 s40, s40, {QROUND}'); a(f's_add_u32 s41, s41, {KROUND}')
    a(f's_lshr_b32 s{sFail}, s{sFail}, 1'); a(f's_cmp_lg_u32 s{sFail}, 0'); a('s_cbranch_scc1 L_sb')
    a('L_end:')
    a('s_endpgm')
    return L

def generate(path):
    body, marks = build_body()
    body_l = body + [salu('s_branch L_loop')]
    resolve_waits(body_l)
    errs = check_hazards(body_l)
    for e in errs[:40]: print(e)
    assert not errs, f'{len(errs)} hazards'
    head = open('cdna_kernels/%s.s.ref' % NAME).read().split('\n')
    hdr = [l for l in head if l.startswith(';') and '@launch' not in l]
    out = hdr + ['; @launch grid=(256,1,1) block=(256,1,1) lds=163840',
                 '.amdgcn_target "amdgcn-amd-amdhsa--gfx950"', '.text', f'.globl {NAME}_kernel', '.p2align 8',
                 f'.type {NAME}_kernel,@function', f'{NAME}_kernel:']
    fmt = lambda t: t if t.endswith(':') else '  ' + t
    out += [fmt(t) for t in prologue(body, marks)]
    out += ['.p2align 6', 'L_loop:'] + [fmt(o.text) for o in body_l]
    out += [fmt(t) for t in slowpath()]
    out += ['.section .rodata,"a"', '.p2align 6', f'.amdhsa_kernel {NAME}_kernel',
            '  .amdhsa_next_free_vgpr 512', f'  .amdhsa_next_free_sgpr {96 if cfg.stamp else 64}', '  .amdhsa_accum_offset 256',
            '  .amdhsa_group_segment_fixed_size 0', '  .amdhsa_kernarg_size 48', '  .amdhsa_user_sgpr_count 2',
            '  .amdhsa_user_sgpr_kernarg_segment_ptr 1', '  .amdhsa_system_sgpr_workgroup_id_x 1', '.end_amdhsa_kernel', '']
    open(path, 'w').write('\n'.join(out))
    import subprocess
    r = subprocess.run(['clang', '-x', 'assembler', '-target', 'amdgcn-amd-amdhsa', '-mcpu=gfx950', '-c', path, '-o', '_chk.o'], capture_output=True, text=True)
    assert r.returncode == 0, r.stderr[:2000]
    print(path, 'ops in body', len(body_l))

if __name__ == '__main__':
    path = f'cdna_kernels/{NAME}.s'
    for arg in sys.argv[1:]:
        if '=' in arg:
            k, v = arg.split('=', 1)
            assert hasattr(cfg, k), k
            setattr(cfg, k, (' ' + v.replace('+', ' ')) if k.endswith('_flags') else eval(v))
        else: path = arg
    generate(path)
```

```python
import re
def R(kind, lo, n=1):
    return [f'{kind}{lo+i}' for i in range(n)]
def rs(kind, lo, n=1):
    return f'{kind}{lo}' if n == 1 else f'{kind}[{lo}:{lo+n-1}]'

class Op:
    __slots__ = ('text', 'kind', 'wr', 'rd', 'srcc', 'id', 'need', 'states', 'tag', 'cls', 'cnt')
    def __init__(self, text, kind, wr=(), rd=(), srcc=(), id=None, need=None, states=1, tag=None):
        self.text = text; self.kind = kind; self.wr = list(wr); self.rd = list(rd)
        self.srcc = list(srcc); self.id = id; self.need = need; self.states = states; self.tag = tag; self.cls = None; self.cnt = None
    def copy(self):
        o = Op(self.text, self.kind, self.wr, self.rd, self.srcc, self.id, self.need, self.states, self.tag); o.cls = self.cls
        return o

def mfma(d, a, b, c):
    ctext = '0' if c is None else rs(c[0], c[1], 4)
    t = f'v_mfma_f32_16x16x32_bf16 {rs(d[0],d[1],4)}, {rs(a[0],a[1],4)}, {rs(b[0],b[1],4)}, {ctext}'
    cc = [] if c is None else R(c[0], c[1], 4)
    return Op(t, 'mfma', wr=R(d[0], d[1], 4), rd=R(a[0], a[1], 4) + R(b[0], b[1], 4), srcc=cc)
def smfmac(d, a, b, idx):
    t = f'v_smfmac_f32_16x16x64_bf16 {rs("v",d,4)}, {rs("a",a,4)}, {rs("v",b,8)}, v{idx}'
    return Op(t, 'mfma', wr=R('v', d, 4), rd=R('a', a, 4) + R('v', b, 8) + [f'v{idx}'], srcc=R('v', d, 4))
def valu(text, wr, rd, kind='valu'):
    return Op(text, kind, wr=wr, rd=rd)
def salu(text):
    return Op(text, 'salu')
def nop(n):
    return Op(f's_nop {n}', 'salu', states=n + 1)
def label(name):
    return Op(f'{name}:', 'label', states=0)

def check_hazards(stream, cyclic=True, window=14, raw=False):
    n = len(stream); errs = []
    for i, p in enumerate(stream):
        if p.kind in ('label',): continue
        dist = 0
        j = i
        steps = 0
        while True:
            j += 1; steps += 1
            if j >= n:
                if not cyclic: break
                j -= n
            if steps > 60: break
            c = stream[j]
            if c.kind == 'label': continue
            need = 0
            pw = set(p.wr)
            if p.kind == 'mfma':
                if c.kind == 'mfma':
                    if pw & set(c.rd): need = max(need, 8)
                    if pw & set(c.srcc):
                        if c.srcc != p.wr or (('smfmac' in c.text) != ('smfmac' in p.text) and False): need = max(need, 6)
                    elif pw & set(c.wr): need = max(need, 6)
                elif c.kind in ('valu', 'trans', 'perm', 'ds', 'vmem'):
                    if pw & (set(c.rd) | set(c.wr)): need = max(need, 8)
                    if c.kind in ('valu', 'trans', 'perm') and set(p.srcc) & set(c.wr): need = max(need, 3)
            if p.kind in ('valu', 'trans', 'perm'):
                if c.kind == 'mfma' and pw & (set(c.rd) | set(c.srcc)): need = max(need, 2)
                if c.kind == 'perm' and pw & set(c.rd): need = max(need, 2)
                if p.kind == 'trans' and c.kind in ('valu', 'perm', 'mfma','ds','vmem') and pw & set(c.rd): need = max(need, 1)
                sw = {r for r in pw if r[0] == 's' or r == 'vcc'}
                if sw and c.kind in ('valu', 'trans') and sw & set(c.rd): need = max(need, 2)
                if sw and c.kind == 'vmem' and sw & set(c.rd): need = max(need, 5)
            if p.kind in ('vmem', 'ds') and p.tag == 'store':
                if c.kind in ('valu', 'trans', 'perm', 'mfma', 'ds', 'vmem') and set(p.rd) & set(c.wr): need = max(need, 2)
            if p.kind == 'salu' and 'm0' in p.wr and c.kind == 'vmem' and 'm0' in c.rd: need = max(need, 1)
            if need > dist:
                errs.append((j, need - dist) if raw else f'hazard need {need} have {dist}: [{i}] {p.text}  ->  [{j}] {c.text}')
            dist += c.states
            if dist >= window: break
    return errs

def fix_hazards(ctx, ops, after=()):
    ctx = list(ctx)[-40:]; after = list(after)[:40]
    while True:
        errs = check_hazards(ctx + ops + after, cyclic=False, raw=True)
        errs = [e for e in errs if e[0] >= len(ctx)]
        if not errs: return ops
        j, k = min(errs)
        k = max(kk for jj, kk in errs if jj == j)
        pos = min(j - len(ctx), len(ops))
        ops.insert(pos, nop(k - 1))

def verify_waits(stream, start=0):
    for i, w in enumerate(stream):
        if i < start or w.kind != 'wait' or w.need is None: continue
        for cls, kind in (('vm', 'vmem'), ('lgkm', 'ds')):
            ids = w.need.get(cls)
            if ids is None or ids == 'all': continue
            ids = set(ids); cnt = 0; found = False
            for j in range(i - 1, -1, -1):
                o = stream[j]
                if o.kind == kind:
                    if o.id in ids: found = True; break
                    cnt += 1
            if found: assert cnt >= w.cnt[cls], (i, w.need, w.text, cnt)

def resolve_waits(stream, cyclic=True, start=0):
    n = len(stream)
    for i, w in enumerate(stream):
        if i < start or w.kind != 'wait' or w.need is None: continue
        parts = []; w.cnt = {}
        for cls, kind, name, mx in (('vm', 'vmem', 'vmcnt', 63), ('lgkm', 'ds', 'lgkmcnt', 15)):
            ids = w.need.get(cls)
            if ids is None: continue
            if ids == 'all':
                parts.append(f'{name}(0)'); continue
            ids = set(ids)
            cnt = 0; j = i; found = False
            for _ in range(n):
                j -= 1
                if j < 0:
                    if not cyclic: break
                    j += n
                o = stream[j]
                if o.kind == kind:
                    if o.id in ids:
                        found = True; break
                    cnt += 1
            assert found, (w.need, i)
            parts.append(f'{name}({min(cnt, mx)})'); w.cnt[cls] = min(cnt, mx)
        w.text = 's_waitcnt ' + ' '.join(parts)
```

```python
import math, struct, sys
from asmlib import *

NAME = 'standalone__gqa_softmax__near_ridge'
def f2u(x): return struct.unpack('<I', struct.pack('<f', x))[0]
CSC = math.log2(math.e) / math.sqrt(128.0)
QBYTES = 32*32*384*128*2
KBYTES = 32*16*512*128*2
QROUND = 256*98304
KROUND = 128*131072

class Cfg:
    stamp = False
    hi = 2.0**40
    st_flags = ''
    q_flags = ' nt'
    kv_flags = ' nt'
    codepf = True
    rot = 0
    nostore = False
    noq = False
    stag = 0
    stagmod = 2
    dbg = False
    drop = ''
    qkorder = 'chain'
cfg = Cfg()

vKrd, vVrd, vQrd, vDmaV, vDmaK, vOst, vIdx = 1, 2, 3, 4, 5, 6, 7
vOw, vOr = 62, 63
vNeg = 8; vT, vU = 14, 15; vS = 16; vP = 32; vL = 40; vl, vr = 52, 53; vO = 64
aQ = 0; aK = 96; aV = 160; aOne = 224; aSt = 228
sQ, sK, sV, sOd = 4, 8, 12, 16
sKV, sQn, sO, sOb, sC, sNC, sHI, sBlk, sFail, sFl, sM0kv, sM0q, sW, sTmp, sKV0, sQ0 = 20, 21, 22, 23, 24, 25, 26, 27, 28, 30, 32, 33, 34, 35, 36, 37
def srd(n): return f's[{n}:{n+3}]'
def srdr(n): return R('s', n, 4)

def S(T, i=0): return vS + 8*(T % 2) + i
def P(T, i=0): return vP + 4*(T % 2) + i
def O(qb, db=0): return vO + 32*qb + 4*db
def Kf(u, idx): return aK + 32*(u % 2) + 4*idx
def Vf(u, db): return aV + 32*(u % 2) + 4*db
def Qf(qb, s): return aQ + 16*qb + 4*s

def kread(u, idx):
    kb, s = idx >> 2, idx & 3
    off = (u % 4)*16384 + kb*8192 + 2048 + s*256
    return Op(f'ds_read_b128 {rs("a",Kf(u,idx),4)}, v{vKrd} offset:{off}', 'ds', wr=R('a', Kf(u, idx), 4), rd=[f'v{vKrd}'], id=('kr', u % 16, idx))
def vread(u, idx):
    db, kb = idx >> 1, idx & 1
    off = (u % 4)*16384 + kb*8192 + 256*(db >> 1) + 8*(db & 1)
    r = Vf(u, db) + 2*kb
    return Op(f'ds_read_b64_tr_b16 {rs("a",r,2)}, v{vVrd} offset:{off}', 'ds', wr=R('a', r, 2), rd=[f'v{vVrd}'], id=('vr', u % 16, idx))
def qread(qb, s):
    off = qb*4096 + s*256
    return Op(f'ds_read_b128 {rs("a",Qf(qb,s),4)}, v{vQrd} offset:{off}', 'ds', wr=R('a', Qf(qb, s), 4), rd=[f'v{vQrd}'], id=('qr', qb, s))
def kvdma(u, i):
    if i < 2:
        t = f'buffer_load_dwordx4 v{vDmaK}, {srd(sK)}, s{sKV} offen offset:{2048+1024*i}{cfg.kv_flags} lds'
        rd = [f'v{vDmaK}'] + srdr(sK)
    else:
        o = f' offset:{1024*(i-2)}' if i > 2 else ''
        t = f'buffer_load_dwordx4 v{vDmaV}, {srd(sV)}, s{sKV} offen{o}{cfg.kv_flags} lds'
        rd = [f'v{vDmaV}'] + srdr(sV)
    return Op(t, 'vmem', rd=rd + ['m0', f's{sKV}'], id=('kv', u % 16, i), tag='dma')
def qdma(n):
    jj = n & 3
    o = f' offset:{1024*jj}' if jj else ''
    t = f'buffer_load_dwordx4 v{vDmaV}, {srd(sQ)}, s{sQn} offen{o}{cfg.q_flags} lds'
    return Op(t, 'vmem', rd=[f'v{vDmaV}', 'm0', f's{sQn}'] + srdr(sQ), id=('qd', n), tag='dma')
def owrite(qb, j):
    r = O(qb, 2*j)
    return Op(f'ds_write_b128 v{vOw}, {rs("v",r,4)} offset:{qb*4096+j*1024}', 'ds', rd=R('v', r, 4) + [f'v{vOw}'], id=('ow', qb, j), tag='store')
def oread(n, slot=None):
    qb, h, qh = n >> 2, (n >> 1) & 1, n & 1
    r = aSt + 4*((n & 1) if slot is None else slot)
    return Op(f'ds_read_b128 {rs("a",r,4)}, v{vOr} offset:{qb*4096+h*2048+qh*512}', 'ds', wr=R('a', r, 4), rd=[f'v{vOr}'], id=('or', n))
def ostore(n, slot=None):
    h, qh = (n >> 1) & 1, n & 1
    r = aSt + 4*((n & 1) if slot is None else slot)
    off = qh*2048 + h*128
    o = f' offset:{off}' if off else ''
    t = f'buffer_store_dwordx4 {rs("a",r,4)}, v{vOst}, {srd(sOd)}, s{sO} offen{o}{cfg.st_flags}'
    return Op(t, 'vmem', rd=R('a', r, 4) + [f'v{vOst}', f's{sO}'] + srdr(sOd), id=('st', n), tag='store')
def setm0(base, add):
    o = salu(f's_add_u32 m0, s{base}, {add}' if add else f's_mov_b32 m0, s{base}')
    o.wr = ['m0']
    return o
def wait(vm=None, lgkm=None):
    need = {}
    if vm is not None: need['vm'] = vm
    if lgkm is not None: need['lgkm'] = lgkm
    return Op('s_waitcnt ?', 'wait', need=need)

class Gap:
    def __init__(self, m):
        self.m = m; self.pre = []; self.sc = []; self.vm = []; self.ds = []; self.va = []; self.post = []
    def ops(self):
        return self.pre + [self.m] + self.sc + self.vm + self.ds + self.va + self.post

def build_body():
    steps = []
    for T in range(96):
        u, qb = divmod(T, 6)
        Tn = (T+1) % 96; un, qn = divmod(Tn, 6)
        Tp = (T-1) % 96; up, qp = divmod(Tp, 6)
        g = []
        order = [(kb, s) for kb in range(2) for s in range(4)]
        if cfg.qkorder == 'pair': order = [(kb, s) for s in range(4) for kb in range(2)]
        if cfg.qkorder == 'snake': order = [(0,0),(1,0),(1,1),(0,1),(0,2),(1,2),(1,3),(0,3)]
        for kb, s in order:
            d = ('v', S(T+1, 4*kb))
            g.append(Gap(mfma(d, ('a', Kf(un, kb*4+s)), ('a', Qf(qn, s)), None if s == 0 else d)))
        for db in range(8):
            d = ('v', O(qp, db))
            g.append(Gap(mfma(d, ('a', Vf(up, db)), ('v', P(Tp)), None if up == 0 else d)))
        x = None
        if T % 2 == 0:
            x = Gap(smfmac(vL + 4*(qp >> 1), aOne, vP, vIdx))
        def f(i): return valu(f'v_fma_f32 v{S(T,i)}, v{S(T,i)}, s{sC}, v{vNeg+qb}', [f'v{S(T,i)}'], [f'v{S(T,i)}', f'v{vNeg+qb}', f's{sC}'])
        def e(i): return valu(f'v_exp_f32 v{S(T,i)}, v{S(T,i)}', [f'v{S(T,i)}'], [f'v{S(T,i)}'], 'trans')
        def c(i): return valu(f'v_cvt_pk_bf16_f32 v{P(T,i)}, v{S(T,2*i)}, v{S(T,2*i+1)}', [f'v{P(T,i)}'], [f'v{S(T,2*i)}', f'v{S(T,2*i+1)}'])
        rd = [kread(u+1, qb*4+i) for i in range(4)] if qb < 2 else [vread(u+1, (qb-2)*4+i) for i in range(4)]
        for i in range(4):
            g[2*i].ds.append(rd[i]); g[2*i].va.append(f(i)); g[2*i+1].va.append(e(i))
        g[8].va += [f(4), c(0)]; g[9].va.append(e(4))
        g[10].va += [f(5), c(1)]; g[11].va.append(e(5))
        g[12].va += [f(6), f(7)]; g[13].va.append(e(6)); g[14].va.append(e(7))
        g[15].va += [c(2), c(3)]
        steps.append((g, x))
    G = lambda T, i: steps[T % 96][0][i]
    X = lambda T: steps[T % 96][1]
    for u in range(16):
        T = 6*u
        G(T-1, 15).sc.append(wait(vm=[('kv', (u+1) % 16, i) for i in range(4)], lgkm='all'))
        G(T, 0).sc.append(Op('s_barrier', 'salu'))
        if cfg.stamp:
            G(T, 0).post += [salu(f'v_writelane_b32 v54, s60, {(u-1)%16}'), salu(f'v_writelane_b32 v55, s62, {(u-1)%16}'),
                             salu('s_memtime s[60:61]'), salu('s_memrealtime s[62:63]')]
            if u == 1: G(T, 0).pre += [salu(f'v_mov_b32 v{61-i}, v{59-i}') for i in range(6)]
        G(T+4, 15).sc.append(wait(lgkm=[('kr', (u+1) % 16, 7)]))
        G(T-1, 13).sc.append(setm0(sM0kv, (u % 4)*16384))
        hasq = 1 <= u <= 12
        tu = u+4
        X(T).vm.append(kvdma(tu, 0))
        G(T, 3).vm.append(kvdma(tu, 1))
        G(T+5, 1).sc.append(salu('s_add_u32 s39, s39, 8192'))
        G(T+5, 3).sc.append(salu('s_and_b32 s39, s39, 0x1ffff'))
        if u == 11: G(T+5, 5).sc.append(salu(f's_add_u32 s38, s38, {KROUND}'))
        G(T+5, 7).sc.append(salu(f's_add_u32 s{sKV}, s38, s39'))
        if hasq:
            G(T, 7).vm.append(kvdma(tu, 2)); G(T, 11).vm.append(kvdma(tu, 3))
            n = 2*(u-1)
            G(T+1, 1).sc.append(setm0(sM0q, (n >> 2)*4096))
            X(T+2).vm.append(qdma(n)); X(T+4).vm.append(qdma(n+1))
            if (n+1) & 3 == 3:
                qinc = 4096 + ((QROUND - 24576) if n+1 == 23 else 0)
                G(T+4, 3).sc.append(salu(f's_add_u32 s{sQn}, s{sQn}, {qinc}'))
        else:
            X(T+2).vm.append(kvdma(tu, 2)); X(T+4).vm.append(kvdma(tu, 3))
    for qb in range(6):
        T = 90+qb
        G(T, 1).sc.append(wait(vm=[('qd', 4*qb+3)]))
        for s in range(4): G(T, 3+2*s).ds.append(qread(qb, s))
        G(T+4, 14).sc.append(wait(lgkm=[('qr', qb, 3)]))
        T = 95+qb
        Sn = lambda i: f'v{S(T+1,i)}'
        t, uu = f'v{vT}', f'v{vU}'
        G(T, 11).va += [valu(f'v_max3_f32 {t}, {Sn(0)}, {Sn(1)}, {Sn(2)}', [t], [Sn(0), Sn(1), Sn(2)]),
                        valu(f'v_max3_f32 {t}, {t}, {Sn(3)}, {Sn(4)}', [t], [t, Sn(3), Sn(4)])]
        G(T, 12).va += [valu(f'v_max3_f32 {t}, {t}, {Sn(5)}, {Sn(6)}', [t], [t, Sn(5), Sn(6)]),
                        valu(f'v_max_f32 {t}, {t}, {Sn(7)}', [t], [t, Sn(7)]),
                        valu(f'v_mov_b32 {uu}, {t}', [uu], [t])]
        G(T, 13).va += [valu(f'v_permlane16_swap_b32 {t}, {uu}', [t, uu], [t, uu], 'perm'),
                        valu(f'v_max_f32 {t}, {t}, {uu}', [t], [t, uu]),
                        valu(f'v_mov_b32 {uu}, {t}', [uu], [t])]
        G(T, 14).va += [valu(f'v_permlane32_swap_b32 {t}, {uu}', [t, uu], [t, uu], 'perm'),
                        valu(f'v_max_f32 {t}, {t}, {uu}', [t], [t, uu])]
        G(T, 15).va += [valu(f'v_mul_f32 v{vNeg+qb}, s{sNC}, {t}', [f'v{vNeg+qb}'], [t, f's{sNC}'])]
        T = 92+qb
        la = vL + 4*(qb >> 1) + 2*(qb & 1)
        G(T, 3).va += [valu(f'v_add_f32 v{vl}, v{la}, v{la+1}', [f'v{vl}'], [f'v{la}', f'v{la+1}']),
                       valu(f'v_rcp_f32 v{vr}, v{vl}', [f'v{vr}'], [f'v{vl}'], 'trans'),
                       valu(f'v_cmp_ngt_f32 vcc, s{sHI}, v{vl}', ['vcc'], [f'v{vl}', f's{sHI}'])]
        G(T, 5).sc.append(salu(f's_or_b64 s[{sFl}:{sFl+1}], s[{sFl}:{sFl+1}], vcc'))
        if qb & 1:
            lb = vL + 4*(qb >> 1)
            G(T, 4).va += [valu(f'v_mov_b32 v{lb+i}, 0', [f'v{lb+i}'], []) for i in range(4)]
        for j in range(4):
            b = O(qb, 2*j)
            mul = [valu(f'v_mul_f32 v{b+i}, v{b+i}, v{vr}', [f'v{b+i}'], [f'v{b+i}', f'v{vr}']) for i in range(8)]
            cv = [valu(f'v_cvt_pk_bf16_f32 v{b+i}, v{b+2*i}, v{b+2*i+1}', [f'v{b+i}'], [f'v{b+2*i}', f'v{b+2*i+1}']) for i in range(4)]
            g0 = 4+3*j
            G(T, g0).va += mul[:4]; G(T, g0+1).va += mul[4:]; G(T, g0+2).va += cv
            if j < 3: G(T, g0+3).ds.append(owrite(qb, j))
            else: G(T+1, 0).ds.append(owrite(qb, j))
    for u in range(12):
        T = 6*u
        for k in range(2):
            n = 2*u+k
            G(T+2+2*k, 8).ds.append(oread(n))
            G(T+3+2*k, 8).sc.append(wait(lgkm=[('or', n)]))
            G(T+3+2*k, 9).vm.append(ostore(n))
        if u & 1: G(T+5, 11).sc.append(salu(f's_add_u32 s{sO}, s{sO}, 4096'))
    G(2, 0).post += [salu(f's_cmp_lg_u64 s[{sFl}:{sFl+1}], 0'), salu(f's_cselect_b32 s{sTmp}, 1, 0'),
                     salu(f's_lshl_b32 s{sTmp}, s{sTmp}, s{sBlk}'), salu(f's_or_b32 s{sFail}, s{sFail}, s{sTmp}'),
                     salu(f's_add_u32 s{sBlk}, s{sBlk}, 1'), salu(f's_cmp_eq_u32 s{sBlk}, 5'), salu('s_cbranch_scc1 L_exit')]
    G(2, 1).sc.append(salu(f's_mov_b64 s[{sFl}:{sFl+1}], 0'))
    G(80, 3).sc.append(salu(f's_mov_b32 s{sO}, s{sOb}' if not cfg.nostore else f's_mov_b32 s{sO}, 0x7000000'))
    if cfg.noq: G(2, 7).sc.append(salu(f's_mov_b32 s{sQ+2}, 0'))
    G(80, 5).sc.append(salu(f's_add_u32 s{sOb}, s{sOb}, {QROUND}'))
    G(95, 0).pre.append(label('L_entry'))
    stream = []; marks = {}
    for T in range(96):
        g, x = steps[T]
        marks[T] = len(stream)
        for i in range(16):
            stream += g[i].ops()
            if i == 0 and x is not None: stream += x.ops()
    marks[96] = len(stream)
    for o in stream:
        t = o.text
        if ('f' in cfg.drop and t.startswith('v_fma')) or ('e' in cfg.drop and t.startswith('v_exp')) or \
           ('c' in cfg.drop and t.startswith('v_cvt') and o.wr[0] in R('v', vP, 8)) or ('s' in cfg.drop and 'smfmac' in t) or \
           ('r' in cfg.drop and o.kind == 'ds' and o.id[0] in ('kr', 'vr') and 2 <= o.id[1]) or \
           ('d' in cfg.drop and o.kind == 'vmem' and o.id[0] == 'kv' and o.id[1] >= 4) or \
           ('q' in cfg.drop and o.kind == 'mfma' and o.wr[0] in R('v', vS, 16)) or \
           ('p' in cfg.drop and o.kind == 'mfma' and 'smfmac' not in t and o.wr[0] not in R('v', vS, 16)):
            o.text = 's_nop 0'
    return stream, marks

def prologue(body, marks):
    L = []
    a = L.append
    a(f's_cmp_ge_u32 s2, 256'); a('s_cbranch_scc1 L_end')
    a('s_load_dwordx4 s[40:43], s[0:1], 0'); a('s_load_dwordx4 s[44:47], s[0:1], 16')
    if cfg.stamp:
        a('s_memtime s[66:67]'); a('s_memrealtime s[68:69]'); a('s_load_dwordx2 s[72:73], s[0:1], 40'); a('s_mov_b32 s64, 63')
    if cfg.dbg:
        a('s_memtime s[66:67]'); a('s_memrealtime s[68:69]'); a('s_load_dwordx2 s[72:73], s[0:1], 32')
    a('v_lshrrev_b32 v60, 6, v0'); a('v_and_b32 v0, 63, v0')
    a(f'v_readfirstlane_b32 s{sW}, v60')
    a('v_and_b32 v54, 15, v0')
    a('v_lshrrev_b32 v55, 4, v0')
    a('v_and_b32 v56, 3, v0')
    a('v_bfe_u32 v57, v0, 2, 2')
    a(f'v_lshlrev_b32 v{vDmaV}, 8, v57'); a(f'v_lshl_add_u32 v{vDmaV}, v55, 6, v{vDmaV}')
    a(f'v_lshl_add_u32 v{vDmaV}, v56, 4, v{vDmaV}')
    a('v_and_b32 v58, 1, v60'); a('v_lshlrev_b32 v58, 5, v58'); a(f'v_xor_b32 v{vDmaK}, v{vDmaV}, v58')
    a('s_and_b32 s48, s2, 7'); a('s_lshr_b32 s49, s2, 3'); a('s_and_b32 s50, s49, 1'); a('s_lshr_b32 s49, s49, 1')
    a('s_lshl_b32 s49, s49, 3'); a('s_add_u32 s49, s49, s48')
    a(f's_lshl_b32 s{sKV0}, s49, 17')
    a('s_lshl_b32 s49, s49, 1'); a('s_add_u32 s49, s49, s50')
    a(f's_mul_i32 s{sQ0}, s49, 98304')
    a(f's_mul_i32 s51, s{sW}, 24576')
    a(f's_add_u32 s{sQ0}, s{sQ0}, s51')
    a(f's_add_u32 s{sM0q}, s51, 65536')
    a(f's_lshl_b32 s{sM0kv}, s{sW}, 12')
    a(f's_lshl_b32 s52, s{sW}, 11')
    a(f's_add_u32 s38, s{sKV0}, s52')
    if cfg.rot == 1:
        a(f's_lshr_b32 s39, s{sKV0}, 4'); a('s_and_b32 s39, s39, 0x1e000')
    elif cfg.rot == 2:
        a(f's_lshr_b32 s39, s{sKV0}, 7'); a('s_and_b32 s39, s39, 0x1e000')
    else: a('s_mov_b32 s39, 0')
    a(f's_add_u32 s{sKV}, s38, s39')
    a(f's_mov_b32 s{sQn}, s{sQ0}')
    a(f's_mov_b32 s{sOb}, s{sQ0}')
    a(f's_mov_b32 s{sO}, 0x7000000')
    a('s_waitcnt lgkmcnt(0)')
    a(f's_mov_b32 s{sQ}, s40'); a(f's_mov_b32 s{sQ+1}, s41'); a(f's_mov_b32 s{sQ+2}, {QBYTES}'); a(f's_mov_b32 s{sQ+3}, 0x20000')
    a(f's_sub_u32 s{sK}, s42, 2048'); a(f's_subb_u32 s{sK+1}, s43, 0'); a(f's_mov_b32 s{sK+2}, {KBYTES+2048}'); a(f's_mov_b32 s{sK+3}, 0x20000')
    a(f's_mov_b32 s{sV}, s44'); a(f's_mov_b32 s{sV+1}, s45'); a(f's_mov_b32 s{sV+2}, {KBYTES}'); a(f's_mov_b32 s{sV+3}, 0x20000')
    a(f's_mov_b32 s{sOd}, s46'); a(f's_mov_b32 s{sOd+1}, s47'); a(f's_mov_b32 s{sOd+2}, {QBYTES}'); a(f's_mov_b32 s{sOd+3}, 0x20000')
    seq = []
    adv = lambda: [salu('s_add_u32 s39, s39, 8192'), salu('s_and_b32 s39, s39, 0x1ffff'), salu(f's_add_u32 s{sKV}, s38, s39')]
    seq += [setm0(sM0kv, 0), nop(0)]
    if cfg.stag:
        seq += [salu('s_lshr_b32 s53, s2, 4'), salu(f's_and_b32 s53, s53, {cfg.stagmod-1}'), salu(f's_mul_i32 s53, s53, {cfg.stag}')]
    for i in range(4):
        seq.append(kvdma(0, i))
        if cfg.stag:
            seq += [salu(f's_cmp_lt_u32 s53, {4-i}'), salu(f's_cbranch_scc1 L_st{i}'), salu('s_waitcnt vmcnt(0)'), label(f'L_st{i}')]
    seq += adv()
    for qb in range(6):
        seq += [setm0(sM0q, qb*4096), nop(0)] + [qdma(4*qb+j) for j in range(4)]
        seq.append(salu(f's_add_u32 s{sQn}, s{sQn}, {4096 + ((QROUND-24576) if qb == 5 else 0)}'))
    for o in body[marks[78]:marks[95]]:
        if o.kind != 'vmem': continue
        if o.id[0] == 'kv':
            if o.id[2] == 0: seq += [setm0(sM0kv, (o.id[1] % 4)*16384), nop(0)]
            seq.append(o)
            if o.id[2] == 3 and o.id[1] < 3: seq += adv()
        else: assert False
    if cfg.codepf:
        seq += [salu(t) for t in ['s_getpc_b64 s[54:55]', 'L_pc:', 's_add_u32 s54, s54, L_loop-L_pc', 's_addc_u32 s55, s55, 0',
                                  's_lshr_b32 s53, s2, 3', f's_lshl_b32 s53, s53, 2', f's_add_u32 s53, s53, s{sW}', 's_mul_i32 s53, s53, 384',
                                  'v_lshl_add_u32 v58, v0, 7, s53', 'v_min_u32 v58, L_end-L_loop, v58', 'v_cmp_gt_u32 vcc, 3, v0', 's_and_saveexec_b64 s[56:57], vcc']]
        seq.append(Op('global_load_dword v59, v58, s[54:55]', 'vmem', id=('pf',)))
        seq.append(salu('s_mov_b64 exec, s[56:57]'))
    mid = []
    m = mid.append
    m('v_bfe_u32 v58, v0, 3, 1'); m(f'v_lshlrev_b32 v{vKrd}, 12, v58')
    m('v_lshlrev_b32 v58, 1, v58'); m('v_xor_b32 v58, v58, v55'); m(f'v_lshl_add_u32 v{vKrd}, v58, 4, v{vKrd}')
    m('v_bfe_u32 v58, v0, 2, 1'); m(f'v_lshl_add_u32 v{vKrd}, v58, 10, v{vKrd}')
    m(f'v_lshl_add_u32 v{vKrd}, v56, 6, v{vKrd}')
    m('v_lshrrev_b32 v58, 5, v0'); m(f'v_lshlrev_b32 v{vVrd}, 12, v58')
    m('v_bfe_u32 v58, v0, 4, 1'); m(f'v_lshl_add_u32 v{vVrd}, v58, 10, v{vVrd}')
    m(f'v_lshl_add_u32 v{vVrd}, v54, 4, v{vVrd}')
    m(f'v_lshlrev_b32 v{vQrd}, 10, v57'); m(f'v_lshl_add_u32 v{vQrd}, v56, 6, v{vQrd}')
    m(f'v_lshl_add_u32 v{vQrd}, v55, 4, v{vQrd}'); m(f'v_add_u32 v{vQrd}, s{sM0q}, v{vQrd}')
    m('v_bfe_u32 v58, v0, 1, 2'); m('v_xor_b32 v58, v58, v55'); m(f'v_lshlrev_b32 v{vOw}, 4, v58')
    m(f'v_lshl_add_u32 v{vOw}, v54, 6, v{vOw}'); m(f'v_add_u32 v{vOw}, s{sM0q}, v{vOw}')
    m('v_xor_b32 v58, v56, v55'); m(f'v_lshlrev_b32 v{vOr}, 4, v58')
    m('v_bfe_u32 v58, v0, 2, 1'); m(f'v_lshl_add_u32 v{vOr}, v58, 10, v{vOr}')
    m('v_lshrrev_b32 v58, 3, v0'); m(f'v_lshl_add_u32 v{vOr}, v58, 6, v{vOr}'); m(f'v_add_u32 v{vOr}, s{sM0q}, v{vOr}')
    m(f'v_lshlrev_b32 v{vOst}, 8, v58'); m('v_and_b32 v58, 7, v0'); m(f'v_lshl_add_u32 v{vOst}, v58, 4, v{vOst}')
    m('v_bfe_u32 v58, v0, 1, 1'); m('v_lshrrev_b32 v61, 5, v0'); m('v_cmp_eq_u32 vcc, v58, v61')
    m('v_mov_b32 v58, 0x3f803f80'); m('s_nop 1'); m('v_cndmask_b32 v58, 0, v58, vcc')
    for i in range(4): m(f'v_accvgpr_write_b32 a{aOne+i}, v58')
    m('v_and_b32 v58, 1, v0'); m('v_mul_u32_u24 v58, 0xaaaa, v58'); m(f'v_add_u32 v{vIdx}, 0x4444, v58')
    for i in range(12): m(f'v_mov_b32 v{vL+i}, 0')
    m(f's_mov_b32 s{sC}, {f2u(CSC):#x}'); m(f's_mov_b32 s{sNC}, {f2u(-CSC):#x}'); m(f's_mov_b32 s{sHI}, {f2u(cfg.hi):#x}')
    m(f's_mov_b32 s{sBlk}, 0'); m(f's_mov_b32 s{sFail}, 0'); m(f's_mov_b64 s[{sFl}:{sFl+1}], 0')
    seq += [salu(t) for t in mid]
    seq += [wait(vm=[('kv', 0, i) for i in range(4)]), salu('s_barrier')]
    rds = [o for o in body[marks[90]:marks[95]] if o.kind == 'ds' and o.id[0] != 'ow']
    seq += [o for o in rds if o.id[0] != 'qr']
    for qb in range(5):
        seq.append(wait(vm=[('qd', 4*qb+3)]))
        seq += [o for o in rds if o.id[0] == 'qr' and o.id[1] == qb]
    seq.append(wait(lgkm='all'))
    resolve_waits(seq, cyclic=False)
    L += [o.text for o in seq]
    if cfg.stamp or cfg.dbg:
        a('s_memtime s[76:77]'); a('s_memrealtime s[78:79]'); a('s_waitcnt lgkmcnt(0)')
    a('s_branch L_entry')
    return L

def slowpath():
    L = []; a = L.append
    mf = lambda d, x, y, c: f'v_mfma_f32_16x16x32_bf16 v[{d}:{d+3}], v[{x}:{x+3}], v[{y}:{y+3}], ' + ('0' if c is None else f'v[{c}:{c+3}]')
    a('L_exit:')
    tail = [oread(n, n % 6) for n in range(6)]
    for n in range(24):
        tail += [wait(lgkm=[('or', n)]), ostore(n, n % 6)]
        if n & 3 == 3: tail.append(salu(f's_add_u32 s{sO}, s{sO}, 4096'))
        if n >= 1 and n+5 < 24: tail.append(oread(n+5, (n+5) % 6))
    resolve_waits(tail, cyclic=False)
    L += [o.text for o in tail]
    if cfg.dbg:
        a('s_memtime s[80:81]'); a('s_memrealtime s[82:83]'); a('s_waitcnt vmcnt(0) lgkmcnt(0)')
        a('s_memrealtime s[86:87]'); a('s_waitcnt lgkmcnt(0)')
        a('s_mov_b32 s74, 256'); a('s_mov_b32 s75, 0x20000')
        a('s_not_b32 s88, s68')
        a('s_sub_u32 s89, s78, s68')
        a('s_sub_u32 s90, s80, s76')
        a('s_sub_u32 s91, s82, s78')
        a('s_not_b32 s92, s91'); a('s_not_b32 s93, s89'); a('s_not_b32 s94, s86')
        a('v_mov_b32 v14, 0')
        for i, r in enumerate([88, 68, 86, 94, 89, 93, 90, 91, 92]): a(f'v_writelane_b32 v14, s{r}, {i}')
        a('v_lshlrev_b32 v15, 2, v0')
        a('s_mov_b64 exec, 0x1ff')
        a('buffer_atomic_umax v14, v15, s[72:75], 0 offen')
        a('s_mov_b64 exec, -1')
    if cfg.stamp:
        a('s_memtime s[80:81]'); a('s_memrealtime s[82:83]'); a('s_waitcnt vmcnt(0) lgkmcnt(0)')
        a('s_memtime s[84:85]'); a('s_memrealtime s[86:87]'); a('s_waitcnt lgkmcnt(0)')
        a('s_mov_b32 s74, 0x1000000'); a('s_mov_b32 s75, 0x20000')
        a('v_mov_b32 v14, 0')
        for i, r in enumerate([66, 68, 76, 78, 60, 62, 80, 82, 84, 86]): a(f'v_writelane_b32 v14, s{r}, {i}')
        a('s_getreg_b32 s70, hwreg(HW_REG_XCC_ID)'); a('v_writelane_b32 v14, s70, 10')
        a('s_getreg_b32 s70, hwreg(HW_REG_HW_ID)'); a('v_writelane_b32 v14, s70, 11')
        a(f's_lshl_b32 s70, s2, 2'); a(f's_add_u32 s70, s70, s{sW}'); a('s_lshl_b32 s70, s70, 10')
        a('v_lshlrev_b32 v15, 2, v0')
        a('s_mov_b64 exec, 0xffff')
        for b in range(4):
            a(f'buffer_store_dword v{60-2*b}, v15, s[72:75], s70 offen offset:{64*b}')
            a(f'buffer_store_dword v{61-2*b}, v15, s[72:75], s70 offen offset:{256+64*b}')
        a('buffer_store_dword v14, v15, s[72:75], s70 offen offset:512')
        a('s_mov_b64 exec, -1')
    a(f's_lshr_b32 s{sFail}, s{sFail}, 1')
    a(f's_cmp_eq_u32 s{sFail}, 0'); a('s_cbranch_scc1 L_end')
    a('s_waitcnt vmcnt(0) lgkmcnt(0)')
    a('v_lshrrev_b32 v58, 4, v0'); a('v_and_b32 v59, 15, v0')
    a(f'v_lshlrev_b32 v{vOst}, 8, v59'); a(f'v_lshl_add_u32 v{vOst}, v58, 4, v{vOst}')
    a('v_lshlrev_b32 v60, 10, v58'); a('v_lshl_add_u32 v60, v59, 4, v60'); a(f'v_add_u32 v60, s{sM0q}, v60')
    a(f's_mov_b32 s40, s{sQ0}'); a(f's_mov_b32 s41, s{sKV0}')
    a('L_sb:')
    a(f's_and_b32 s42, s{sFail}, 1'); a('s_cmp_eq_u32 s42, 0'); a('s_cbranch_scc1 L_sb_next')
    a('s_mov_b32 s43, s40'); a('s_mov_b32 s44, 6')
    a('L_sq:')
    for s in range(4): a(f'buffer_load_dwordx4 v[{64+4*s}:{67+4*s}], v{vOst}, {srd(sQ)}, s43 offen offset:{64*s}')
    a('v_mov_b32 v14, 0xff800000')
    a('s_mov_b32 s45, s41'); a('s_mov_b32 s46, 32')
    a('L_s1:')
    for s in range(4): a(f'buffer_load_dwordx4 v[{80+4*s}:{83+4*s}], v{vOst}, {srd(sK)}, s45 offen offset:{2048+64*s}')
    a('s_waitcnt vmcnt(0)')
    for s in range(4): a(mf(16, 80+4*s, 64+4*s, None if s == 0 else 16))
    a('s_nop 15')
    a('v_max3_f32 v14, v14, v16, v17'); a('v_max3_f32 v14, v14, v18, v19')
    a('s_add_u32 s45, s45, 4096'); a('s_sub_u32 s46, s46, 1'); a('s_cmp_lg_u32 s46, 0'); a('s_cbranch_scc1 L_s1')
    for sw in ('16', '32'):
        a('v_mov_b32 v15, v14'); a('s_nop 1'); a(f'v_permlane{sw}_swap_b32 v14, v15'); a('s_nop 1'); a('v_max_f32 v14, v14, v15')
    a(f'v_mul_f32 v14, s{sNC}, v14')
    a('v_mov_b32 v52, 0')
    for i in range(32): a(f'v_mov_b32 v{128+i}, 0')
    a('s_mov_b32 s45, s41'); a('s_mov_b32 s46, 16')
    a('L_s2:')
    a('s_add_u32 s47, s45, 4096')
    for kb in range(2):
        for s in range(4): a(f'buffer_load_dwordx4 v[{80+16*kb+4*s}:{83+16*kb+4*s}], v{vOst}, {srd(sK)}, s{45+2*kb} offen offset:{2048+64*s}')
    for h in range(2):
        a(f's_add_u32 m0, s{sM0q}, {4096*h}'); a('s_nop 0')
        for j in range(4): a(f'buffer_load_dwordx4 v{vDmaV}, {srd(sV)}, s{45+2*h} offen offset:{1024*j} lds')
    a('s_waitcnt vmcnt(0)')
    for db in range(8):
        for kb in range(2):
            r = 160+4*db+2*kb
            a(f'ds_read_b64_tr_b16 v[{r}:{r+1}], v60 offset:{kb*4096+256*(db>>1)+8*(db&1)}')
    for kb in range(2):
        for s in range(4): a(mf(16+4*kb, 80+16*kb+4*s, 64+4*s, None if s == 0 else 16+4*kb))
    a('s_nop 15')
    for i in range(8): a(f'v_fma_f32 v{16+i}, v{16+i}, s{sC}, v14')
    for i in range(8): a(f'v_exp_f32 v{16+i}, v{16+i}')
    a('s_nop 0')
    for i in range(8): a(f'v_add_f32 v52, v52, v{16+i}')
    for i in range(4): a(f'v_cvt_pk_bf16_f32 v{32+i}, v{16+2*i}, v{17+2*i}')
    a('s_waitcnt lgkmcnt(0)'); a('s_nop 1')
    for db in range(8): a(mf(128+4*db, 160+4*db, 32, 128+4*db))
    a('s_add_u32 s45, s45, 8192'); a('s_sub_u32 s46, s46, 1'); a('s_cmp_lg_u32 s46, 0'); a('s_cbranch_scc1 L_s2')
    for sw in ('16', '32'):
        a('v_mov_b32 v15, v52'); a('s_nop 1'); a(f'v_permlane{sw}_swap_b32 v52, v15'); a('s_nop 1'); a('v_add_f32 v52, v52, v15')
    a('v_rcp_f32 v53, v52')
    a('s_nop 15')
    for i in range(32): a(f'v_mul_f32 v{128+i}, v{128+i}, v53')
    for j in range(4):
        b = 128+8*j
        for i in range(4): a(f'v_cvt_pk_bf16_f32 v{b+i}, v{b+2*i}, v{b+2*i+1}')
        a(f'buffer_store_dwordx4 v[{b}:{b+3}], v{vOst}, {srd(sOd)}, s43 offen offset:{64*j}')
    a('s_waitcnt vmcnt(0)')
    a('s_add_u32 s43, s43, 4096'); a('s_sub_u32 s44, s44, 1'); a('s_cmp_lg_u32 s44, 0'); a('s_cbranch_scc1 L_sq')
    a('L_sb_next:')
    a(f's_add_u32 s40, s40, {QROUND}'); a(f's_add_u32 s41, s41, {KROUND}')
    a(f's_lshr_b32 s{sFail}, s{sFail}, 1'); a(f's_cmp_lg_u32 s{sFail}, 0'); a('s_cbranch_scc1 L_sb')
    a('L_end:')
    a('s_endpgm')
    return L

def generate(path):
    body, marks = build_body()
    body_l = body + [salu('s_branch L_loop')]
    resolve_waits(body_l)
    errs = check_hazards(body_l)
    for e in errs[:40]: print(e)
    assert not errs, f'{len(errs)} hazards'
    head = open('cdna_kernels/%s.s.ref' % NAME).read().split('\n')
    hdr = [l for l in head if l.startswith(';') and '@launch' not in l]
    out = hdr + ['; @launch grid=(256,1,1) block=(256,1,1) lds=163840',
                 '.amdgcn_target "amdgcn-amd-amdhsa--gfx950"', '.text', f'.globl {NAME}_kernel', '.p2align 8',
                 f'.type {NAME}_kernel,@function', f'{NAME}_kernel:']
    fmt = lambda t: t if t.endswith(':') else '  ' + t
    out += [fmt(t) for t in prologue(body, marks)]
    out += ['.p2align 6', 'L_loop:'] + [fmt(o.text) for o in body_l]
    out += [fmt(t) for t in slowpath()]
    out += ['.section .rodata,"a"', '.p2align 6', f'.amdhsa_kernel {NAME}_kernel',
            '  .amdhsa_next_free_vgpr 512', f'  .amdhsa_next_free_sgpr {96 if cfg.stamp or cfg.dbg else 64}', '  .amdhsa_accum_offset 256',
            '  .amdhsa_group_segment_fixed_size 0', '  .amdhsa_kernarg_size 48', '  .amdhsa_user_sgpr_count 2',
            '  .amdhsa_user_sgpr_kernarg_segment_ptr 1', '  .amdhsa_system_sgpr_workgroup_id_x 1', '.end_amdhsa_kernel', '']
    open(path, 'w').write('\n'.join(out))
    import subprocess
    r = subprocess.run(['clang', '-x', 'assembler', '-target', 'amdgcn-amd-amdhsa', '-mcpu=gfx950', '-c', path, '-o', '_chk.o'], capture_output=True, text=True)
    assert r.returncode == 0, r.stderr[:2000]
    print(path, 'ops in body', len(body_l))

if __name__ == '__main__':
    path = f'cdna_kernels/{NAME}.s'
    for arg in sys.argv[1:]:
        if '=' in arg:
            k, v = arg.split('=', 1)
            assert hasattr(cfg, k), k
            setattr(cfg, k, (' ' + v.replace('+', ' ')) if k.endswith('_flags') else eval(v))
        else: path = arg
    generate(path)
```

```python
import subprocess, sys
HEAD = '''.amdgcn_target "amdgcn-amd-amdhsa--gfx950"
.text
'''
def kernel(name, body, iters, nvgpr=256, accum=256, pre="", waves_per_wg=4):
    s = f'''
.globl {name}
.p2align 8
.type {name},@function
{name}:
  s_load_dwordx4 s[4:7], s[0:1], 0
  s_waitcnt lgkmcnt(0)
  s_mov_b32 s8, s4
  s_mov_b32 s9, s5
  s_mov_b32 s10, 0x10000000
  s_mov_b32 s11, 0x20000
  s_mov_b32 s12, s6
  s_mov_b32 s13, s7
  s_mov_b32 s14, 0x4000000
  s_mov_b32 s15, 0x20000
  v_lshlrev_b32 v1, 4, v0
  s_lshl_b32 s3, s2, 16
  v_add_u32 v1, s3, v1
'''
    for i in range(16):
        s += f'  buffer_load_dwordx4 v[{8+4*i}:{11+4*i}], v1, s[8:11], 0 offen\n  v_add_u32 v1, 0x2000, v1\n'
    s += '  s_waitcnt vmcnt(0)\n'
    s += pre
    s += f'''
  s_barrier
  s_mov_b32 s20, {iters}
  s_memtime s[16:17]
  s_memrealtime s[18:19]
  s_waitcnt lgkmcnt(0)
.p2align 6
{name}_loop:
{body}
  s_sub_u32 s20, s20, 1
  s_cmp_lg_u32 s20, 0
  s_cbranch_scc1 {name}_loop
  s_nop 15
  s_memtime s[24:25]
  s_memrealtime s[26:27]
  s_waitcnt lgkmcnt(0) vmcnt(0)
  s_sub_u32 s24, s24, s16
  s_sub_u32 s26, s26, s18
  v_mov_b32 v2, s24
  v_mov_b32 v3, s26
  v_lshrrev_b32 v1, 6, v0
  s_mul_i32 s3, s2, {waves_per_wg}
  v_add_u32 v1, s3, v1
  v_lshlrev_b32 v1, 3, v1
  v_and_b32 v4, 63, v0
  v_cmp_eq_u32 vcc, 0, v4
  s_and_saveexec_b64 s[30:31], vcc
  buffer_store_dwordx2 v[2:3], v1, s[12:15], 0 offen
  s_waitcnt vmcnt(0)
  s_endpgm
'''
    kd = f'''
.section .rodata,"a"
.p2align 6
.amdhsa_kernel {name}
  .amdhsa_next_free_vgpr {nvgpr}
  .amdhsa_next_free_sgpr 96
  .amdhsa_accum_offset {accum}
  .amdhsa_group_segment_fixed_size 0
  .amdhsa_kernarg_size 16
  .amdhsa_user_sgpr_count 2
  .amdhsa_user_sgpr_kernarg_segment_ptr 1
  .amdhsa_system_sgpr_workgroup_id_x 1
.end_amdhsa_kernel
.text
'''
    md = f'''  - .name: {name}
    .symbol: {name}.kd
    .kernarg_segment_size: 16
    .kernarg_segment_align: 8
    .group_segment_fixed_size: 0
    .private_segment_fixed_size: 0
    .wavefront_size: 64
    .sgpr_count: 96
    .vgpr_count: {nvgpr}
    .max_flat_workgroup_size: 1024
    .args:
      - {{.name: kernargs, .size: 16, .offset: 0, .value_kind: by_value}}
'''
    return s + kd, md

def build(fname, kernels):
    txt = HEAD
    mds = ""
    for (s, md) in kernels:
        txt += s
        mds += md
    txt += "\n.amdgpu_metadata\n---\namdhsa.version: [1, 2]\namdhsa.kernels:\n" + mds + "...\n.end_amdgpu_metadata\n"
    open(fname + ".s", "w").write(txt)
    r = subprocess.run(["clang", "-x", "assembler", "-target", "amdgcn-amd-amdhsa", "-mcpu=gfx950", fname + ".s", "-o", fname + ".co"], capture_output=True, text=True)
    if r.returncode:
        print(r.stderr[:3000]); sys.exit(1)
```

```python
import subprocess, sys
from ubgen import build
def kernel(name, body, iters, nseg, nvgpr=256, accum=256, pre="", waves_per_wg=4, nload=16):
    s = f'''
.globl {name}
.p2align 8
.type {name},@function
{name}:
  s_load_dwordx4 s[4:7], s[0:1], 0
  s_waitcnt lgkmcnt(0)
  s_mov_b32 s8, s4
  s_mov_b32 s9, s5
  s_mov_b32 s10, 0x10000000
  s_mov_b32 s11, 0x20000
  s_mov_b32 s12, s6
  s_mov_b32 s13, s7
  s_mov_b32 s14, 0x4000000
  s_mov_b32 s15, 0x20000
  v_lshlrev_b32 v1, 4, v0
  s_lshl_b32 s3, s2, 18
  v_add_u32 v1, s3, v1
'''
    for i in range(nload):
        s += f'  buffer_load_dwordx4 v[{8+4*i}:{11+4*i}], v1, s[8:11], 0 offen\n  v_add_u32 v1, 0x2000, v1\n'
    s += '  s_waitcnt vmcnt(0)\n'
    s += f'''
  v_lshrrev_b32 v1, 6, v0
  s_mul_i32 s3, s2, {waves_per_wg}
  v_add_u32 v1, s3, v1
  v_mul_u32_u24 v1, {8*nseg}, v1
  v_and_b32 v4, 63, v0
  v_cmp_eq_u32 s[32:33], 0, v4
'''
    s += pre
    s += f'''
  s_barrier
  s_mov_b32 s28, {nseg}
{name}_seg:
  s_mov_b32 s20, {iters}
  s_memtime s[16:17]
  s_memrealtime s[18:19]
  s_waitcnt lgkmcnt(0)
.p2align 6
{name}_loop:
{body}
  s_sub_u32 s20, s20, 1
  s_cmp_lg_u32 s20, 0
  s_cbranch_scc1 {name}_loop
  s_memtime s[24:25]
  s_memrealtime s[26:27]
  s_waitcnt lgkmcnt(0)
  s_sub_u32 s24, s24, s16
  s_sub_u32 s26, s26, s18
  v_mov_b32 v2, s24
  v_mov_b32 v3, s26
  s_and_saveexec_b64 s[30:31], s[32:33]
  buffer_store_dwordx2 v[2:3], v1, s[12:15], 0 offen
  s_mov_b64 exec, s[30:31]
  v_add_u32 v1, 8, v1
  s_sub_u32 s28, s28, 1
  s_cmp_lg_u32 s28, 0
  s_cbranch_scc1 {name}_seg
  s_waitcnt vmcnt(0)
  s_endpgm
'''
    kd = f'''
.section .rodata,"a"
.p2align 6
.amdhsa_kernel {name}
  .amdhsa_next_free_vgpr {nvgpr}
  .amdhsa_next_free_sgpr 96
  .amdhsa_accum_offset {accum}
  .amdhsa_group_segment_fixed_size 0
  .amdhsa_kernarg_size 16
  .amdhsa_user_sgpr_count 2
  .amdhsa_user_sgpr_kernarg_segment_ptr 1
  .amdhsa_system_sgpr_workgroup_id_x 1
.end_amdhsa_kernel
.text
'''
    md = f'''  - .name: {name}
    .symbol: {name}.kd
    .kernarg_segment_size: 16
    .kernarg_segment_align: 8
    .group_segment_fixed_size: 0
    .private_segment_fixed_size: 0
    .wavefront_size: 64
    .sgpr_count: 96
    .vgpr_count: {nvgpr}
    .max_flat_workgroup_size: 1024
    .args:
      - {{.name: kernargs, .size: 16, .offset: 0, .value_kind: by_value}}
'''
    return s + kd, md
```

```python
from ubgen2 import *
ks=[]; names=[]
def add(name, body, iters, **kw):
    ks.append(kernel(name, body, iters, 1, **kw)); names.append(name)
pre='  v_lshlrev_b32 v5, 4, v0\n'
for i in range(16): pre+=f'  ds_write_b128 v5, v[{8+4*i}:{11+4*i}] offset:{i*4096}\n'
for i in range(224):
    pre+=f'  v_alignbit_b32 v6, v{8+(i%64)}, v{8+((i*7+3+i//64)%64)}, 16\n'
    pre+=f'  v_accvgpr_write_b32 a{i}, v6\n'
pre+='  s_waitcnt lgkmcnt(0)\n'
pre+='  v_mov_b32 v6, 0x3f803f80\n'+''.join(f'  v_accvgpr_write_b32 a{224+i}, v6\n' for i in range(4))
pre+='  v_mov_b32 v2, v8\n v_mov_b32 v3, v9\n'
pre+=''.join(f'  v_mov_b32 v{i}, 0\n' for i in list(range(8,256)))
pre+='  v_mov_b32 v7, 0x4444\n  s_mov_b32 s21, 0x3e029000\n v_and_b32 v4, 63, v0\n v_lshlrev_b32 v5, 4, v4\n v_lshlrev_b32 v6, 3, v4\n v_mov_b32 v4, -2.0\n'
def m16(d,a,b,B,z): return f'  v_mfma_f32_16x16x32_bf16 v[{d}:{d+3}], a[{a}:{a+3}], {B}[{b}:{b+3}], '+('0' if z else f'v[{d}:{d+3}]')+'\n'
def m32(d,a,b,B,z): return f'  v_mfma_f32_32x32x16_bf16 v[{d}:{d+15}], a[{a}:{a+3}], {B}[{b}:{b+3}], '+('0' if z else f'v[{d}:{d+15}]')+'\n'
xc=[0]
def X():
    xc[0]+=1
    return f'  v_mul_f32 v{60+xc[0]%2}, v2, v3\n' if xc[0]%3 else '  v_cvt_pk_bf16_f32 v62, v60, v61\n'
def Rd(u,j):
    if j<8: return f'  ds_read_b128 a[{32*(1-u)+4*j}:{32*(1-u)+4*j+3}], v5 offset:{u*16384+j*1024}\n'
    idx=j-8; rr=64+32*(1-u)+2*idx
    return f'  ds_read_b64_tr_b16 a[{rr}:{rr+1}], v6 offset:{u*16384+8192+idx*512}\n'
def body16(extra):
    s=''
    for T in range(12):
        u,qb=divmod(T,6); qn=(T+1)%6; un=((T+1)//6)%2; qp=(T-1)%6; up=(((T-1)%12)//6)
        S=lambda i:8+8*(T%2)+i
        M=[m16(8+8*((T+1)%2)+4*kb, 32*un+4*(kb*4+k), 128+16*qn+4*k,'a',k==0) for kb in range(2) for k in range(4)]
        M+=[m16(64+32*qp+4*db, 64+32*up+4*db, 24+4*((T-1)%2),'v',False) for db in range(8)]
        F=lambda i: f'  v_fma_f32 v{S(i)}, v{S(i)}, s21, v4\n'
        E=lambda i: f'  v_exp_f32 v{S(i)}, v{S(i)}\n'
        Cc=lambda i: f'  v_cvt_pk_bf16_f32 v{24+4*(T%2)+i}, v{S(2*i)}, v{S(2*i+1)}\n'
        R=lambda i: Rd(u,qb*4+i)
        g=[R(0)+F(0),E(0),R(1)+F(1),E(1),R(2)+F(2),E(2),R(3)+F(3),E(3),F(4)+Cc(0),E(4),F(5)+Cc(1),E(5),F(6)+F(7),E(6),E(7),Cc(2)+Cc(3)]
        ex=extra
        for i in range(16):
            s+=M[i]+g[i]
            if i==0 and T%2==0:
                s+=f'  v_smfmac_f32_16x16x64_bf16 v[{48+4*(qp>>1)}:{51+4*(qp>>1)}], a[224:227], v[24:31], v7\n'
                for _ in range(min(2,ex)): s+=X(); ex-=1
            if i>=8 and ex>0:
                n=(ex+(15-i))//(16-i)
                for _ in range(n): s+=X()
                ex-=n
    return s
def body32(extra, lsm=False):
    s=''
    for T in range(6):
        u,qb=divmod(T,3); qn=(T+1)%3; un=((T+1)//3)%2; qp=(T-1)%3; up=(((T-1)%6)//3)
        S=lambda i:8+16*(T%2)+i
        M=[m32(8+16*((T+1)%2), 32*un+4*k, 128+32*qn+4*k,'a',k==0) for k in range(8)]
        M+=[m32(64+64*qp+16*db, 64+32*up+4*(db*2+ks_), 40+8*((T-1)%2)+4*ks_,'v',False) for ks_ in range(2) for db in range(4)]
        ex=extra
        for i in range(16):
            s+=M[i]
            if i%2==0: s+=Rd(u,qb*8+i//2)
            s+=f'  v_fma_f32 v{S(i)}, v{S(i)}, s21, v4\n'
            if i>0 and not lsm: s+=f'  v_add_f32 v{56+qb}, v{56+qb}, v{S(i-1)}\n'
            if i>0 and i%2==0: s+=f'  v_cvt_pk_bf16_f32 v{40+8*(T%2)+i//2-1}, v{S(i-2)}, v{S(i-1)}\n'
            s+=f'  v_exp_f32 v{S(i)}, v{S(i)}\n'
            room = (2 if i%2 else 0) + (1 if lsm else 0)
            rem = 16-i
            n=min(ex, room if ex<=sum((2 if j%2 else 0)+(1 if lsm else 0) for j in range(i,16)) else (ex+rem-1)//rem)
            for _ in range(n): s+=X()
            ex-=n
            if i==0 and lsm: s+=f'  v_smfmac_f32_16x16x64_bf16 v[56:59], a[224:227], v[{40+8*((T-1)%2)}:{47+8*((T-1)%2)}], v7\n'
        s+='  s_nop 0\n'
        if not lsm: s+=f'  v_add_f32 v{56+qb}, v{56+qb}, v{S(15)}\n'
        s+=f'  v_cvt_pk_bf16_f32 v{40+8*(T%2)+7}, v{S(14)}, v{S(15)}\n'
    return s
kw=dict(pre=pre,nvgpr=512,accum=256)
add('m16_x0',body16(0),32,**kw); add('m32_x0',body32(0),32,**kw); add('m32s_x0',body32(0,True),32,**kw)
add('m16_x10',body16(10),32,**kw); add('m32_x20',body32(20),32,**kw); add('m32s_x20',body32(20,True),32,**kw)
add('m32_x12',body32(12),32,**kw)
build('ub14', ks)
open('ub14.names','w').write(','.join(names))
```

```python
from ubgen2 import *
ks=[]; names=[]
def add(name, body, iters, **kw):
    ks.append(kernel(name, body, iters, 1, **kw)); names.append(name)
pre='  v_lshlrev_b32 v5, 4, v0\n'
for i in range(16): pre+=f'  ds_write_b128 v5, v[{8+4*i}:{11+4*i}] offset:{i*4096}\n'
for i in range(224):
    pre+=f'  v_alignbit_b32 v6, v{8+(i%64)}, v{8+((i*7+3+i//64)%64)}, 16\n'
    pre+=f'  v_accvgpr_write_b32 a{i}, v6\n'
pre+='  s_waitcnt lgkmcnt(0)\n'
pre+='  v_mov_b32 v6, 0x3f803f80\n'+''.join(f'  v_accvgpr_write_b32 a{224+i}, v6\n' for i in range(4))
for i in range(8): pre+=f'  v_and_b32 v{24+i}, 0x3fff3fff, v{40+i}\n'
pre+=''.join(f'  v_mov_b32 v{i}, 0\n' for i in list(range(8,24))+list(range(40,256)))
pre+=''.join(f'  v_mov_b32 v{32+i}, -2.0\n' for i in range(6))
pre+='  v_mov_b32 v7, 0x4444\n  s_mov_b32 s21, 0x3e029000\n v_mov_b32 v38, s21\n v_and_b32 v4, 63, v0\n v_lshlrev_b32 v5, 4, v4\n v_lshlrev_b32 v6, 3, v4\n'
def m16(d,a,b,B,z): return f'  v_mfma_f32_16x16x32_bf16 v[{d}:{d+3}], a[{a}:{a+3}], {B}[{b}:{b+3}], '+('0' if z else f'v[{d}:{d+3}]')+'\n'
def body(f='fma',e='exp',c='cvt',r=True,smf=True,rev=False,spos=0,pvrev=False,tmpl=0,swap=False):
    s=''
    for T in range(12):
        u,qb=divmod(T,6); qn=(T+1)%6; un=((T+1)//6)%2; qp=(T-1)%6; up=(((T-1)%12)//6)
        S=lambda i:8+8*(T%2)+i
        M=[m16(8+8*((T+1)%2)+4*kb, 32*un+4*(kb*4+k), 128+16*qn+4*k,'a',k==(3 if rev and kb else 0)) for kb in range(2) for k in (range(3,-1,-1) if rev and kb else range(4))]
        M+=[m16(64+32*qp+4*db, 64+32*up+4*db, 24+4*((T-1)%2),'v',False) for db in range(8)]
        def F(i):
            if f=='fma': return f'  v_fma_f32 v{S(i)}, v{S(i)}, s21, v{32+qb}\n'
            if f=='fmav': return f'  v_fma_f32 v{S(i)}, v{S(i)}, v38, v{32+qb}\n'
            if f=='fmamk': return f'  v_fmamk_f32 v{S(i)}, v{S(i)}, 0x3e029000, v{32+qb}\n'
            if f=='mul': return f'  v_mul_f32 v{S(i)}, s21, v{S(i)}\n'
            if f=='fmac2': return f'  v_fma_f32 v{S(i)}, v{S(i)}, s21, -2.0\n'
            return ''
        def E(i):
            if e=='exp': return f'  v_exp_f32 v{S(i)}, v{S(i)}\n'
            if e=='leg': return f'  v_exp_legacy_f32 v{S(i)}, v{S(i)}\n'
            return ''
        def Cc(i):
            if c=='cvt': return f'  v_cvt_pk_bf16_f32 v{24+4*(T%2)+i}, v{S(2*i)}, v{S(2*i+1)}\n'
            if c=='perm': return f'  v_perm_b32 v{24+4*(T%2)+i}, v{S(2*i+1)}, v{S(2*i)}, s22\n'
            if c=='dummy': return f'  v_cvt_pk_bf16_f32 v{40+4*(T%2)+i}, v{S(2*i)}, v{S(2*i+1)}\n'
            return ''
        def Rd(i):
            if not r: return ''
            idx=(qb*4+i) if qb<2 else (qb-2)*4+i
            if qb<2: return f'  ds_read_b128 a[{32*(1-u)+4*idx}:{32*(1-u)+4*idx+3}], v5 offset:{u*16384+idx*1024}\n'
            rr=64+32*(1-u)+2*idx
            return f'  ds_read_b64_tr_b16 a[{rr}:{rr+1}], v6 offset:{u*16384+8192+idx*512}\n'
        g=[Rd(0)+F(0),E(0),Rd(1)+F(1),E(1),Rd(2)+F(2),E(2),Rd(3)+F(3),E(3),F(4)+Cc(0),E(4),F(5)+Cc(1),E(5),F(6)+F(7),E(6),E(7),Cc(2)+Cc(3)]
        if tmpl==1: g=[Rd(0)+F(0),E(0),F(1)+F(2),E(1),Rd(1)+F(3),E(2),F(4)+Cc(0),E(3),Rd(2)+F(5),E(4),F(6)+Cc(1),E(5),Rd(3)+F(7),E(6),E(7),Cc(2)+Cc(3)]
        if tmpl==2: g=[F(0)+F(1),F(2)+F(3),F(4)+F(5),F(6)+F(7),E(0),E(1),E(2),E(3),E(4),E(5),E(6),E(7),Rd(0)+Cc(0),Rd(1)+Cc(1),Rd(2)+Cc(2),Rd(3)+Cc(3)]
        if tmpl==3: g=[Rd(0)+F(0),Rd(1)+F(1),Rd(2)+F(2),Rd(3)+F(3),F(4)+F(5),F(6)+F(7),E(0),E(1),E(2),E(3),E(4),E(5),E(6),E(7),Cc(0)+Cc(1),Cc(2)+Cc(3)]
        if pvrev and T%2: M=M[:8]+M[8:][::-1]
        for i in range(16):
            s+=M[i]+g[i]
            if i==spos and T%2==0 and smf: s+=f'  v_smfmac_f32_16x16x64_bf16 v[{48+4*(qp>>1)}:{51+4*(qp>>1)}], a[224:227], v[24:31], v7\n'
    return s
kw=dict(pre=pre+'  s_mov_b32 s22, 0x07060302\n',nvgpr=512,accum=256)
add('rev',body(rev=True),32,**kw)
add('t1',body(rev=True,tmpl=1),32,**kw)
add('t2',body(rev=True,tmpl=2),32,**kw)
add('t3',body(rev=True,tmpl=3),32,**kw)
add('pvrev',body(rev=True,pvrev=True),32,**kw)
add('mul',body(rev=True,f='mul'),32,**kw)
add('perm',body(rev=True,c='perm'),32,**kw)
build('ub18', ks)
open('ub18.names','w').write(','.join(names))
```
